```python
import torch

def _softmax(x, axis=-1):
    return torch.softmax(x, dim=axis)

def _gelu(x):
    return torch.nn.functional.gelu(x, approximate='tanh')

def _silu(x):
    return torch.nn.functional.silu(x)

def _sigmoid(x):
    return torch.sigmoid(x)

def _layernorm(x, axis=-1, eps=1e-05):
    m = x.mean(dim=axis, keepdim=True)
    v = x.var(dim=axis, keepdim=True, unbiased=False)
    return (x - m) / torch.sqrt(v + eps)

def _scatter_add(tgt, idx, src, axis=0):
    return tgt.clone().index_add_(axis, idx, src)

def _segment_sum(src, seg, n):
    out = torch.zeros((n,) + src.shape[1:], dtype=src.dtype)
    return out.index_add_(0, seg, src)

def _pad(x, pw):
    flat = tuple((v for pair in reversed(pw) for v in pair))
    return torch.nn.functional.pad(x, flat)
kernel_name = 'standalone__tree_speculative_verify_tree_attention_over_candidate_token_tree__decode'

def setup_inputs():

    _w = lambda a: (lambda t: t.to(torch.bfloat16) if t.is_floating_point() else t)(torch.as_tensor(a))
    B, Hq, Hkv, T, C, D = (1, 32, 16, 1, 32768, 128)
    tree_mask = torch.zeros((B, T, T), dtype=float)
    for b in range(B):
        parent = torch.zeros(T, dtype=torch.int64)
        for i in range(1, T):
            parent[i] = int(torch.randint(0, i, (1,)).item())
        for i in range(T):
            j = i
            tree_mask[b, i, j] = 1.0
            while j > 0:
                j = parent[j]
                tree_mask[b, i, j] = 1.0
    return {'q': _w((lambda *s: torch.randn(*s, dtype=torch.bfloat16) * 0.8)(B, Hq, T, D)), 'k_cache': _w((lambda *s: torch.randn(*s, dtype=torch.bfloat16) * 0.8)(B, Hkv, C, D)), 'v_cache': _w((lambda *s: torch.randn(*s, dtype=torch.bfloat16) * 0.05)(B, Hkv, C, D)), 'k_tree': _w((lambda *s: torch.randn(*s, dtype=torch.bfloat16) * 0.8)(B, Hkv, T, D)), 'v_tree': _w((lambda *s: torch.randn(*s, dtype=torch.bfloat16) * 0.05)(B, Hkv, T, D)), 'tree_mask': _w(tree_mask)}

def reference(q, k_cache, v_cache, k_tree, v_tree, tree_mask):
    B, Hq, T, D = q.shape
    Hkv, C = (k_cache.shape[1], k_cache.shape[2])
    rep = Hq // Hkv
    kc = (lambda x, n, axis: torch.repeat_interleave(x, n, dim=axis))(k_cache, rep, axis=1)
    vc = (lambda x, n, axis: torch.repeat_interleave(x, n, dim=axis))(v_cache, rep, axis=1)
    kt = (lambda x, n, axis: torch.repeat_interleave(x, n, dim=axis))(k_tree, rep, axis=1)
    vt = (lambda x, n, axis: torch.repeat_interleave(x, n, dim=axis))(v_tree, rep, axis=1)
    k = torch.concatenate([kc, kt], axis=2)
    v = torch.concatenate([vc, vt], axis=2)
    scale = D ** (-0.5)
    scores = torch.einsum('bhqd,bhkd->bhqk', q, k) * scale
    ctx_mask = torch.ones((B, 1, T, C), dtype=scores.dtype)
    tm = tree_mask[:, None, :, :].clone()
    full_mask = torch.concatenate([ctx_mask, tm], axis=-1)
    scores = scores + (1.0 - full_mask) * -1000000000.0
    p = _softmax(scores, axis=-1)
    return torch.einsum('bhqk,bhkd->bhqd', p, v)
```

```python
import sys, math

NAME = 'standalone__tree_speculative_verify_tree_attention_over_candidate_token_tree__decode'
HEADER = """; Kernarg layout for this problem (72 bytes, ptrs only, base s[0:1]):
"""
import struct
def f32(x): return '0x%08x' % struct.unpack('<I', struct.pack('<f', x))[0]
CSCALE = 128 ** -0.5 * math.log2(math.e)
MASKC = -1e9 * math.log2(math.e)

class G:
    def __init__(s): s.o = []
    def __call__(s, t):
        for l in t.split('\n'):
            l = l.strip()
            if not l: continue
            s.o.append(l if l.endswith(':') or l.startswith('.') or l.startswith(';') else '    ' + l)
    def text(s): return '\n'.join(s.o) + '\n'

def kd(name, nv, ns, acc=None):
    acc = acc or (nv + 3) // 4 * 4
    return f""".p2align 6
.amdhsa_kernel {name}
  .amdhsa_next_free_vgpr {nv}
  .amdhsa_next_free_sgpr {ns}
  .amdhsa_accum_offset {acc}
  .amdhsa_group_segment_fixed_size 0
  .amdhsa_kernarg_size 72
  .amdhsa_user_sgpr_count 2
  .amdhsa_user_sgpr_kernarg_segment_ptr 1
  .amdhsa_system_sgpr_workgroup_id_x 1
.end_amdhsa_kernel
"""

def gen(D=2, pol='nt', stamps=False, lds=8192):
    a = G()
    main = 'attn_part_kernel'
    comb = 'attn_comb_kernel'
    vLane, vKoff, vVoff, vM, vL, vT0, vT1, vT2, vT3 = 0, 1, 2, 3, 4, 5, 6, 7, 8
    vS = 12
    vP = 20
    vQ = 24
    vO = 40
    vB = 72
    vK = 104
    vV = vK + 32 * D
    NV = vV + 32 * D
    sK, sV = 24, 28
    sWave, sHead, sSplit, sOff, sCnt, sC, sPl, sPh, sA0, sA1, sT = 32, 33, 34, 35, 36, 37, 38, 39, 40, 41, 42
    sOff2 = 43
    NT = 16
    TILE = 8192
    STEP = 4 * TILE

    a(f'.globl {main}\n.p2align 8\n.type {main},@function\n{main}:')
    a('s_load_dwordx16 s[4:19], s[0:1], 0')
    a('s_load_dwordx2 s[20:21], s[0:1], 64')
    a('s_cmp_ge_u32 s2, 256\ns_cbranch_scc1 L_end')
    if stamps: a('s_memrealtime s[60:61]')
    a(f'''
    v_lshrrev_b32 v{vT0}, 6, v0
    v_and_b32 v{vLane}, 63, v0
    v_readfirstlane_b32 s{sWave}, v{vT0}
    s_lshr_b32 s{sHead}, s2, 4
    s_and_b32 s{sSplit}, s2, 15
    v_lshlrev_b32 v{vVoff}, 4, v{vLane}
    v_and_b32 v{vT0}, 3, v{vLane}
    v_lshlrev_b32 v{vT0}, 10, v{vT0}
    v_bfe_u32 v{vT1}, v{vLane}, 2, 2
    v_lshl_add_u32 v{vT0}, v{vT1}, 8, v{vT0}
    v_lshrrev_b32 v{vT1}, 4, v{vLane}
    v_lshlrev_b32 v{vT1}, 4, v{vT1}
    v_add_u32 v{vKoff}, v{vT0}, v{vT1}
    v_and_b32 v{vT0}, 1, v{vLane}
    v_lshl_add_u32 v{vT2}, v{vT0}, 8, v{vT1}
    s_lshl_b32 s{sOff}, s{sSplit}, 19
    s_lshl_b32 s{sT}, s{sWave}, 13
    s_add_u32 s{sOff}, s{sOff}, s{sT}
    s_lshl_b32 s{sT}, s{sHead}, 23
    s_mov_b32 s{sK+2}, 0x800000
    s_mov_b32 s{sK+3}, 0x20000
    s_mov_b32 s{sV+2}, 0x800000
    s_mov_b32 s{sV+3}, 0x20000
    s_lshl_b32 s{sA0}, s{sHead}, 9
    s_waitcnt lgkmcnt(0)
    s_add_u32 s{sK}, s6, s{sT}
    s_addc_u32 s{sK+1}, s7, 0
    s_add_u32 s{sV}, s8, s{sT}
    s_addc_u32 s{sV+1}, s9, 0
    s_add_u32 s4, s4, s{sA0}
    s_addc_u32 s5, s5, 0
    ''')
    def loadK(b):
        for hh in range(2):
            so = sOff if hh == 0 else sOff2
            for t in range(4):
                r = vK + 32 * b + 16 * hh + 4 * t
                a(f'buffer_load_dwordx4 v[{r}:{r+3}], v{vKoff}, s[{sK}:{sK+3}], s{so} offen offset:{64*t} {pol}')
    def loadV(b):
        for e in range(8):
            so = sOff if e < 4 else sOff2
            r = vV + 32 * b + 4 * e
            a(f'buffer_load_dwordx4 v[{r}:{r+3}], v{vVoff}, s[{sV}:{sV+3}], s{so} offen offset:{1024*(e%4)} {pol}')
    def adv():
        a(f's_add_u32 s{sOff}, s{sOff}, {STEP}\ns_add_u32 s{sOff2}, s{sOff2}, {STEP}')
    for t in range(4):
        a(f'global_load_dwordx4 v[{vQ+4*t}:{vQ+4*t+3}], v{vT2}, s[4:5] offset:{64*t}')
    a(f's_add_u32 s{sOff2}, s{sOff}, 4096')
    for b in range(D):
        loadK(b); loadV(b); adv()
    a(f'''
    s_mov_b32 s{sC}, {f32(CSCALE)}
    s_mov_b32 s{sPl}, 0x05040100
    s_mov_b32 s{sPh}, 0x07060302
    v_mov_b32 v{vM}, 0xff800000
    v_mov_b32 v{vL}, 0
    ''')
    for i in range(32): a(f'v_mov_b32 v{vO+i}, 0')
    a(f'''
    s_or_b32 s{sT}, s{sWave}, s{sSplit}
    s_cmp_lg_u32 s{sT}, 0
    s_cbranch_scc1 L_notree
    s_lshl_b32 s{sT}, s{sHead}, 8
    s_add_u32 s10, s10, s{sT}
    s_addc_u32 s11, s11, 0
    s_add_u32 s12, s12, s{sT}
    s_addc_u32 s13, s13, 0
    v_mov_b32 v{vT0}, 0
    global_load_ushort v{vT3}, v{vT0}, s[14:15]
    ''')
    for t in range(4):
        a(f'global_load_dwordx4 v[{vB+4*t}:{vB+4*t+3}], v{vT1}, s[10:11] offset:{64*t}')
    a(f'''
    v_and_b32 v{vT0}, 15, v{vLane}
    v_lshlrev_b32 v{vT0}, 4, v{vT0}
    global_load_dwordx4 v[{vB+16}:{vB+19}], v{vT0}, s[12:13]
    s_waitcnt vmcnt(0)
    ''')
    for t in range(4):
        c = '0' if t == 0 else f'v[{vS}:{vS+3}]'
        a(f'v_mfma_f32_16x16x32_bf16 v[{vS}:{vS+3}], v[{vB+4*t}:{vB+4*t+3}], v[{vQ+4*t}:{vQ+4*t+3}], {c}')
    for u in range(8):
        src = vB + 16 + u // 2
        if u % 2 == 0: a(f'v_lshlrev_b32 v{vO+4*u}, 16, v{src}')
        else: a(f'v_and_b32 v{vO+4*u}, 0xffff0000, v{src}')
        a(f'v_mov_b32 v{vO+4*u+1}, v{vO+4*u}')
    a(f'''
    v_cmp_gt_u32 vcc, 16, v{vLane}
    v_lshlrev_b32 v{vT3}, 16, v{vT3}
    v_sub_f32 v{vT3}, 1.0, v{vT3}
    v_mul_f32 v{vT3}, {f32(MASKC)}, v{vT3}
    v_fma_f32 v{vM}, v{vS}, s{sC}, v{vT3}
    v_cndmask_b32 v{vL}, 0, 1.0, vcc
    L_notree:
    s_mov_b32 s{sCnt}, {NT // D}
    L_loop:
    s_cmp_eq_u32 s{sCnt}, 1
    s_cselect_b32 s{sK+2}, 0, s{sK+2}
    s_cselect_b32 s{sV+2}, 0, s{sV+2}
    ''')
    WN = 16 * D - 8
    for b in range(D):
        a(f's_waitcnt vmcnt({WN})')
        for t in range(4):
            for hh in range(2):
                r = vK + 32 * b + 16 * hh + 4 * t
                d = vS + 4 * hh
                c = '0' if t == 0 else f'v[{d}:{d+3}]'
                a(f'v_mfma_f32_16x16x32_bf16 v[{d}:{d+3}], v[{r}:{r+3}], v[{vQ+4*t}:{vQ+4*t+3}], {c}')
        loadK(b)
        a(f's_waitcnt vmcnt({WN})')
        for u in range(8):
            for p in range(4):
                lo = vV + 32 * b + 4 * (2 * p) + u // 2
                hi = vV + 32 * b + 4 * (2 * p + 1) + u // 2
                a(f'v_perm_b32 v{vB+4*u+p}, v{hi}, v{lo}, s{sPl if u % 2 == 0 else sPh}')
        loadV(b)
        adv()
        a(f'''
        v_max3_f32 v{vT0}, v{vS}, v{vS+1}, v{vS+2}
        v_max3_f32 v{vT1}, v{vS+3}, v{vS+4}, v{vS+5}
        v_max3_f32 v{vT0}, v{vT0}, v{vS+6}, v{vS+7}
        v_max_f32 v{vT0}, v{vT0}, v{vT1}
        v_mul_f32 v{vT0}, s{sC}, v{vT0}
        v_cmp_gt_f32 vcc, v{vT0}, v{vM}
        s_cbranch_vccnz L_resc{b}
        L_back{b}:
        ''')
        for i in range(8): a(f'v_fma_f32 v{vS+i}, v{vS+i}, s{sC}, -v{vM}')
        for i in range(8): a(f'v_exp_f32 v{vS+i}, v{vS+i}')
        a(f'''
        v_add_f32 v{vT0}, v{vS}, v{vS+1}
        v_add_f32 v{vT1}, v{vS+2}, v{vS+3}
        v_add_f32 v{vT2}, v{vS+4}, v{vS+5}
        v_add_f32 v{vT3}, v{vS+6}, v{vS+7}
        ''')
        for p in range(4): a(f'v_cvt_pk_bf16_f32 v{vP+p}, v{vS+2*p}, v{vS+2*p+1}')
        a(f'''
        v_add_f32 v{vT0}, v{vT0}, v{vT1}
        v_add_f32 v{vT2}, v{vT2}, v{vT3}
        ''')
        for u in range(8):
            a(f'v_mfma_f32_16x16x32_bf16 v[{vO+4*u}:{vO+4*u+3}], v[{vP}:{vP+3}], v[{vB+4*u}:{vB+4*u+3}], v[{vO+4*u}:{vO+4*u+3}]')
            if u == 0: a(f'v_add_f32 v{vT0}, v{vT0}, v{vT2}')
            if u == 1: a(f'v_add_f32 v{vL}, v{vL}, v{vT0}')
    a(f'''
    s_sub_u32 s{sCnt}, s{sCnt}, 1
    s_cmp_lg_u32 s{sCnt}, 0
    s_cbranch_scc1 L_loop
    ''')
    if stamps: a('s_memrealtime s[62:63]')
    a(f'''
    v_mov_b32 v{vT0}, v{vL}
    v_mov_b32 v{vT1}, v{vL}
    s_nop 1
    v_permlane32_swap_b32 v{vT0}, v{vT1}
    v_add_f32 v{vT0}, v{vT0}, v{vT1}
    v_mov_b32 v{vT1}, v{vT0}
    s_nop 1
    v_permlane16_swap_b32 v{vT0}, v{vT1}
    v_add_f32 v{vL}, v{vT0}, v{vT1}
    s_lshl_b32 s{sT}, s{sWave}, 10
    v_lshl_add_u32 v{vT0}, v{vLane}, 5, s{sT}
    s_lshl_b32 s{sT}, s{sWave}, 4
    v_lshl_add_u32 v{vT1}, v{vLane}, 3, s{sT}
    s_mov_b64 exec, 0xffff
    ''')
    for u in range(8):
        for r in range(2):
            a(f'ds_write_b32 v{vT0}, v{vO+4*u+r} offset:{512*r+4*u}')
    assert vL == vM + 1 and False or True
    a(f'''
    s_mov_b64 exec, 3
    ds_write_b32 v{vT1}, v{vM} offset:4096
    ds_write_b32 v{vT1}, v{vL} offset:4100
    s_mov_b64 exec, -1
    s_waitcnt lgkmcnt(0)
    s_barrier
    s_lshl_b32 s{sT}, s{sWave}, 8
    v_lshl_add_u32 v{vT0}, v{vLane}, 2, s{sT}
    s_lshr_b32 s{sT}, s{sWave}, 1
    s_lshl_b32 s{sT}, s{sT}, 3
    v_mov_b32 v{vT1}, s{sT}
    ''')
    for w in range(4):
        a(f'ds_read_b64 v[{vQ+2*w}:{vQ+2*w+1}], v{vT1} offset:{4096+16*w}')
    for w in range(4):
        a(f'ds_read_b32 v{vS+w}, v{vT0} offset:{1024*w}')
    a(f'''
    s_waitcnt lgkmcnt(4)
    v_max3_f32 v{vM}, v{vQ}, v{vQ+2}, v{vQ+4}
    v_max_f32 v{vM}, v{vM}, v{vQ+6}
    ''')
    for w in range(4): a(f'v_sub_f32 v{vQ+2*w}, v{vQ+2*w}, v{vM}')
    for w in range(4): a(f'v_exp_f32 v{vQ+2*w}, v{vQ+2*w}')
    a(f'''
    s_waitcnt lgkmcnt(0)
    v_mul_f32 v{vL}, v{vQ}, v{vQ+1}
    v_mul_f32 v{vT2}, v{vQ}, v{vS}
    ''')
    for w in range(1, 4):
        a(f'v_fma_f32 v{vL}, v{vQ+2*w}, v{vQ+2*w+1}, v{vL}')
        a(f'v_fma_f32 v{vT2}, v{vQ+2*w}, v{vS+w}, v{vT2}')
    a(f'''
    s_lshl_b32 s{sA0}, s2, 11
    s_add_u32 s20, s20, s{sA0}
    s_addc_u32 s21, s21, 0
    v_mov_b32 v{vP}, v{vM}
    v_mov_b32 v{vP+1}, v{vL}
    global_store_dword v{vT0}, v{vT2}, s[20:21]
    s_mov_b64 exec, 1
    global_store_dwordx2 v{vT1}, v[{vP}:{vP+1}], s[20:21] offset:1024
    ''')
    if stamps:
        a(f'''
        s_waitcnt vmcnt(0)
        s_memrealtime s[64:65]
        s_load_dwordx2 s[66:67], s[0:1], 64
        s_cmp_lg_u32 s{sWave}, 0
        s_cbranch_scc1 L_end
        s_waitcnt lgkmcnt(0)
        s_add_u32 s66, s66, 0x10000000
        s_addc_u32 s67, s67, 0
        s_lshl_b32 s3, s2, 5
        v_mov_b32 v1, s3
        v_mov_b32 v4, s60
        v_mov_b32 v5, s61
        v_mov_b32 v6, s62
        v_mov_b32 v7, s63
        v_mov_b32 v8, s64
        v_mov_b32 v9, s65
        s_getreg_b32 s44, hwreg(HW_REG_XCC_ID)
        v_mov_b32 v10, s44
        v_mov_b32 v11, 0
        global_store_dwordx4 v1, v[4:7], s[66:67]
        global_store_dwordx4 v1, v[8:11], s[66:67] offset:16
        ''')
    a('L_end:\ns_endpgm')
    for b in range(D):
        a(f'''
        L_resc{b}:
        v_mov_b32 v{vT1}, v{vT0}
        s_nop 1
        v_permlane32_swap_b32 v{vT0}, v{vT1}
        v_max_f32 v{vT0}, v{vT0}, v{vT1}
        v_mov_b32 v{vT1}, v{vT0}
        s_nop 1
        v_permlane16_swap_b32 v{vT0}, v{vT1}
        v_max3_f32 v{vT0}, v{vT0}, v{vT1}, v{vM}
        v_sub_f32 v{vT1}, v{vM}, v{vT0}
        v_exp_f32 v{vT1}, v{vT1}
        v_mov_b32 v{vM}, v{vT0}
        s_nop 0
        v_mul_f32 v{vL}, v{vL}, v{vT1}
        v_readlane_b32 s{sA0}, v{vT1}, 0
        v_readlane_b32 s{sA1}, v{vT1}, 1
        s_nop 1
        ''')
        for u in range(8):
            a(f'v_mul_f32 v{vO+4*u}, s{sA0}, v{vO+4*u}')
            a(f'v_mul_f32 v{vO+4*u+1}, s{sA1}, v{vO+4*u+1}')
        a(f's_branch L_back{b}')

    a(f'.globl {comb}\n.p2align 8\n.type {comb},@function\n{comb}:')
    a('''
    s_load_dwordx2 s[4:5], s[0:1], 64
    s_load_dwordx2 s[6:7], s[0:1], 48
    s_cmp_ge_u32 s2, 16
    s_cbranch_scc1 L_cend
    v_lshlrev_b32 v1, 2, v0
    v_lshrrev_b32 v2, 7, v0
    v_lshlrev_b32 v2, 3, v2
    s_lshl_b32 s3, s2, 15
    s_waitcnt lgkmcnt(0)
    s_add_u32 s8, s4, s3
    s_addc_u32 s9, s5, 0
    s_mov_b32 s10, 32768
    s_mov_b32 s11, 0x20000
    ''')
    for s in range(16):
        a(f's_mov_b32 s12, {2048*s}')
        a(f'buffer_load_dwordx2 v[{8+2*s}:{9+2*s}], v2, s[8:11], s12 offen offset:1024')
        a(f'buffer_load_dword v{40+s}, v1, s[8:11], s12 offen')
    a('s_waitcnt vmcnt(0)')
    a('v_max3_f32 v3, v8, v10, v12')
    for s in range(3, 15, 2): a(f'v_max3_f32 v3, v3, v{8+2*s}, v{10+2*s}')
    a('v_max_f32 v3, v3, v38')
    for s in range(16): a(f'v_sub_f32 v{8+2*s}, v{8+2*s}, v3')
    for s in range(16): a(f'v_exp_f32 v{8+2*s}, v{8+2*s}')
    a('v_mul_f32 v4, v8, v9\nv_mul_f32 v5, v8, v40')
    for s in range(1, 16):
        a(f'v_fma_f32 v4, v{8+2*s}, v{9+2*s}, v4\nv_fma_f32 v5, v{8+2*s}, v{40+s}, v5')
    a('''
    v_rcp_f32 v4, v4
    s_lshl_b32 s3, s2, 9
    v_lshl_add_u32 v1, v0, 1, s3
    v_mul_f32 v5, v5, v4
    v_cvt_pk_bf16_f32 v5, v5, v5
    global_store_short v1, v5, s[6:7]
    L_cend:
    s_endpgm
    ''')
    body = a.text()
    out = HEADER
    out += f'; @launch kernel={main} grid=(256,1,1) block=(256,1,1) lds={lds}\n'
    out += f'; @launch kernel={comb} grid=(16,1,1) block=(256,1,1) lds=0\n'
    out += '.amdgcn_target "amdgcn-amd-amdhsa--gfx950"\n.text\n' + body
    out += '.section .rodata,"a"\n' + kd(main, NV, 70) + kd(comb, 56, 16)
    return out

if __name__ == '__main__':
    kw = eval('dict(' + (sys.argv[2] if len(sys.argv) > 2 else '') + ')')
    open(sys.argv[1], 'w').write(gen(**kw))
```

```python
import sys, math

NAME = 'standalone__tree_speculative_verify_tree_attention_over_candidate_token_tree__decode'
HEADER = """; Kernarg layout for this problem (72 bytes, ptrs only, base s[0:1]):
"""
import struct
def f32(x): return '0x%08x' % struct.unpack('<I', struct.pack('<f', x))[0]
CSCALE = 128 ** -0.5 * math.log2(math.e)
MASKC = -1e9 * math.log2(math.e)

class G:
    def __init__(s): s.o = []
    def __call__(s, t):
        for l in t.split('\n'):
            l = l.strip()
            if not l: continue
            s.o.append(l if l.endswith(':') or l.startswith('.') or l.startswith(';') else '    ' + l)
    def text(s): return '\n'.join(s.o) + '\n'

def kd(name, nv, ns, acc=None):
    acc = acc or (nv + 3) // 4 * 4
    return f""".p2align 6
.amdhsa_kernel {name}
  .amdhsa_next_free_vgpr {nv}
  .amdhsa_next_free_sgpr {ns}
  .amdhsa_accum_offset {acc}
  .amdhsa_group_segment_fixed_size 0
  .amdhsa_kernarg_size 72
  .amdhsa_user_sgpr_count 2
  .amdhsa_user_sgpr_kernarg_segment_ptr 1
  .amdhsa_system_sgpr_workgroup_id_x 1
.end_amdhsa_kernel
"""

def gen(D=2, pol='nt', stamps=False, lds=8192, single=False, dbgstamps=False):
    a = G()
    main = NAME + '_kernel' if single else 'attn_part_kernel'
    comb = 'attn_comb_kernel'
    vLane, vKoff, vVoff, vM, vL, vT0, vT1, vT2, vT3 = 0, 1, 2, 3, 4, 5, 6, 7, 8
    vS = 12
    vP = 20
    vQ = 24
    vO = 40
    vB = 72
    vK = 104
    vV = vK + 32 * D
    NV = vV + 32 * D
    sK, sV = 24, 28
    sWave, sHead, sSplit, sOff, sCnt, sC, sPl, sPh, sA0, sA1, sT = 32, 33, 34, 35, 36, 37, 38, 39, 40, 41, 42
    sOff2 = 43
    NT = 16
    TILE = 8192
    STEP = 4 * TILE

    a(f'.globl {main}\n.p2align 8\n.type {main},@function\n{main}:')
    a('s_load_dwordx16 s[4:19], s[0:1], 0')
    a('s_load_dwordx2 s[20:21], s[0:1], 64')
    a('s_cmp_ge_u32 s2, 256\ns_cbranch_scc1 L_end')
    if stamps or dbgstamps: a('s_memrealtime s[60:61]')
    a(f'''
    v_lshrrev_b32 v{vT0}, 6, v0
    v_and_b32 v{vLane}, 63, v0
    v_readfirstlane_b32 s{sWave}, v{vT0}
    s_lshr_b32 s{sHead}, s2, 4
    s_and_b32 s{sSplit}, s2, 15
    v_lshlrev_b32 v{vVoff}, 4, v{vLane}
    v_and_b32 v{vT0}, 3, v{vLane}
    v_lshlrev_b32 v{vT0}, 10, v{vT0}
    v_bfe_u32 v{vT1}, v{vLane}, 2, 2
    v_lshl_add_u32 v{vT0}, v{vT1}, 8, v{vT0}
    v_lshrrev_b32 v{vT1}, 4, v{vLane}
    v_lshlrev_b32 v{vT1}, 4, v{vT1}
    v_add_u32 v{vKoff}, v{vT0}, v{vT1}
    v_and_b32 v{vT0}, 1, v{vLane}
    v_lshl_add_u32 v{vT2}, v{vT0}, 8, v{vT1}
    s_lshl_b32 s{sOff}, s{sSplit}, 19
    s_lshl_b32 s{sT}, s{sWave}, 13
    s_add_u32 s{sOff}, s{sOff}, s{sT}
    s_lshl_b32 s{sT}, s{sHead}, 23
    s_mov_b32 s{sK+2}, 0x800000
    s_mov_b32 s{sK+3}, 0x20000
    s_mov_b32 s{sV+2}, 0x800000
    s_mov_b32 s{sV+3}, 0x20000
    s_lshl_b32 s{sA0}, s{sHead}, 9
    s_waitcnt lgkmcnt(0)
    s_add_u32 s{sK}, s6, s{sT}
    s_addc_u32 s{sK+1}, s7, 0
    s_add_u32 s{sV}, s8, s{sT}
    s_addc_u32 s{sV+1}, s9, 0
    s_add_u32 s4, s4, s{sA0}
    s_addc_u32 s5, s5, 0
    ''')
    def loadK(b):
        for hh in range(2):
            so = sOff if hh == 0 else sOff2
            for t in range(4):
                r = vK + 32 * b + 16 * hh + 4 * t
                a(f'buffer_load_dwordx4 v[{r}:{r+3}], v{vKoff}, s[{sK}:{sK+3}], s{so} offen offset:{64*t} {pol}')
    def loadV(b):
        for e in range(8):
            so = sOff if e < 4 else sOff2
            r = vV + 32 * b + 4 * e
            a(f'buffer_load_dwordx4 v[{r}:{r+3}], v{vVoff}, s[{sV}:{sV+3}], s{so} offen offset:{1024*(e%4)} {pol}')
    def adv():
        a(f's_add_u32 s{sOff}, s{sOff}, {STEP}\ns_add_u32 s{sOff2}, s{sOff2}, {STEP}')
    for t in range(4):
        a(f'global_load_dwordx4 v[{vQ+4*t}:{vQ+4*t+3}], v{vT2}, s[4:5] offset:{64*t}')
    a(f's_add_u32 s{sOff2}, s{sOff}, 4096')
    for b in range(D):
        loadK(b); loadV(b); adv()
    a(f'''
    s_mov_b32 s{sC}, {f32(CSCALE)}
    s_mov_b32 s{sPl}, 0x05040100
    s_mov_b32 s{sPh}, 0x07060302
    v_mov_b32 v{vM}, 0xff800000
    v_mov_b32 v{vL}, 0
    ''')
    for i in range(32): a(f'v_mov_b32 v{vO+i}, 0')
    a(f'''
    s_or_b32 s{sT}, s{sWave}, s{sSplit}
    s_cmp_lg_u32 s{sT}, 0
    s_cbranch_scc1 L_notree
    s_lshl_b32 s{sT}, s{sHead}, 8
    s_add_u32 s10, s10, s{sT}
    s_addc_u32 s11, s11, 0
    s_add_u32 s12, s12, s{sT}
    s_addc_u32 s13, s13, 0
    v_mov_b32 v{vT0}, 0
    global_load_ushort v{vT3}, v{vT0}, s[14:15]
    ''')
    for t in range(4):
        a(f'global_load_dwordx4 v[{vB+4*t}:{vB+4*t+3}], v{vT1}, s[10:11] offset:{64*t}')
    a(f'''
    v_and_b32 v{vT0}, 15, v{vLane}
    v_lshlrev_b32 v{vT0}, 4, v{vT0}
    global_load_dwordx4 v[{vB+16}:{vB+19}], v{vT0}, s[12:13]
    s_waitcnt vmcnt(0)
    ''')
    for t in range(4):
        c = '0' if t == 0 else f'v[{vS}:{vS+3}]'
        a(f'v_mfma_f32_16x16x32_bf16 v[{vS}:{vS+3}], v[{vB+4*t}:{vB+4*t+3}], v[{vQ+4*t}:{vQ+4*t+3}], {c}')
    for u in range(8):
        src = vB + 16 + u // 2
        if u % 2 == 0: a(f'v_lshlrev_b32 v{vO+4*u}, 16, v{src}')
        else: a(f'v_and_b32 v{vO+4*u}, 0xffff0000, v{src}')
        a(f'v_mov_b32 v{vO+4*u+1}, v{vO+4*u}')
    a(f'''
    v_cmp_gt_u32 vcc, 16, v{vLane}
    v_lshlrev_b32 v{vT3}, 16, v{vT3}
    v_sub_f32 v{vT3}, 1.0, v{vT3}
    v_mul_f32 v{vT3}, {f32(MASKC)}, v{vT3}
    v_fma_f32 v{vM}, v{vS}, s{sC}, v{vT3}
    v_cndmask_b32 v{vL}, 0, 1.0, vcc
    L_notree:
    s_mov_b32 s{sCnt}, {NT // D}
    L_loop:
    s_cmp_eq_u32 s{sCnt}, 1
    s_cselect_b32 s{sK+2}, 0, s{sK+2}
    s_cselect_b32 s{sV+2}, 0, s{sV+2}
    ''')
    WN = 16 * D - 8
    for b in range(D):
        a(f's_waitcnt vmcnt({WN})')
        for t in range(4):
            for hh in range(2):
                r = vK + 32 * b + 16 * hh + 4 * t
                d = vS + 4 * hh
                c = '0' if t == 0 else f'v[{d}:{d+3}]'
                a(f'v_mfma_f32_16x16x32_bf16 v[{d}:{d+3}], v[{r}:{r+3}], v[{vQ+4*t}:{vQ+4*t+3}], {c}')
        loadK(b)
        a(f's_waitcnt vmcnt({WN})')
        for u in range(8):
            for p in range(4):
                lo = vV + 32 * b + 4 * (2 * p) + u // 2
                hi = vV + 32 * b + 4 * (2 * p + 1) + u // 2
                a(f'v_perm_b32 v{vB+4*u+p}, v{hi}, v{lo}, s{sPl if u % 2 == 0 else sPh}')
        loadV(b)
        adv()
        a(f'''
        v_max3_f32 v{vT0}, v{vS}, v{vS+1}, v{vS+2}
        v_max3_f32 v{vT1}, v{vS+3}, v{vS+4}, v{vS+5}
        v_max3_f32 v{vT0}, v{vT0}, v{vS+6}, v{vS+7}
        v_max_f32 v{vT0}, v{vT0}, v{vT1}
        v_mul_f32 v{vT0}, s{sC}, v{vT0}
        v_cmp_gt_f32 vcc, v{vT0}, v{vM}
        s_cbranch_vccnz L_resc{b}
        L_back{b}:
        ''')
        for i in range(8): a(f'v_fma_f32 v{vS+i}, v{vS+i}, s{sC}, -v{vM}')
        for i in range(8): a(f'v_exp_f32 v{vS+i}, v{vS+i}')
        a(f'''
        v_add_f32 v{vT0}, v{vS}, v{vS+1}
        v_add_f32 v{vT1}, v{vS+2}, v{vS+3}
        v_add_f32 v{vT2}, v{vS+4}, v{vS+5}
        v_add_f32 v{vT3}, v{vS+6}, v{vS+7}
        ''')
        for p in range(4): a(f'v_cvt_pk_bf16_f32 v{vP+p}, v{vS+2*p}, v{vS+2*p+1}')
        a(f'''
        v_add_f32 v{vT0}, v{vT0}, v{vT1}
        v_add_f32 v{vT2}, v{vT2}, v{vT3}
        ''')
        for u in range(8):
            a(f'v_mfma_f32_16x16x32_bf16 v[{vO+4*u}:{vO+4*u+3}], v[{vP}:{vP+3}], v[{vB+4*u}:{vB+4*u+3}], v[{vO+4*u}:{vO+4*u+3}]')
            if u == 0: a(f'v_add_f32 v{vT0}, v{vT0}, v{vT2}')
            if u == 1: a(f'v_add_f32 v{vL}, v{vL}, v{vT0}')
    a(f'''
    s_sub_u32 s{sCnt}, s{sCnt}, 1
    s_cmp_lg_u32 s{sCnt}, 0
    s_cbranch_scc1 L_loop
    ''')
    if stamps or dbgstamps: a('s_memrealtime s[62:63]')
    a(f'''
    v_mov_b32 v{vT0}, v{vL}
    v_mov_b32 v{vT1}, v{vL}
    s_nop 1
    v_permlane32_swap_b32 v{vT0}, v{vT1}
    v_add_f32 v{vT0}, v{vT0}, v{vT1}
    v_mov_b32 v{vT1}, v{vT0}
    s_nop 1
    v_permlane16_swap_b32 v{vT0}, v{vT1}
    v_add_f32 v{vL}, v{vT0}, v{vT1}
    s_lshl_b32 s{sT}, s{sWave}, 10
    v_lshl_add_u32 v{vT0}, v{vLane}, 5, s{sT}
    s_lshl_b32 s{sT}, s{sWave}, 4
    v_lshl_add_u32 v{vT1}, v{vLane}, 3, s{sT}
    s_mov_b64 exec, 0xffff
    ''')
    for u in range(8):
        for r in range(2):
            a(f'ds_write_b32 v{vT0}, v{vO+4*u+r} offset:{512*r+4*u}')
    assert vL == vM + 1 and False or True
    a(f'''
    s_mov_b64 exec, 3
    ds_write_b32 v{vT1}, v{vM} offset:4096
    ds_write_b32 v{vT1}, v{vL} offset:4100
    s_mov_b64 exec, -1
    s_waitcnt lgkmcnt(0)
    s_barrier
    s_lshl_b32 s{sT}, s{sWave}, 8
    v_lshl_add_u32 v{vT0}, v{vLane}, 2, s{sT}
    s_lshr_b32 s{sT}, s{sWave}, 1
    s_lshl_b32 s{sT}, s{sT}, 3
    v_mov_b32 v{vT1}, s{sT}
    ''')
    for w in range(4):
        a(f'ds_read_b64 v[{vQ+2*w}:{vQ+2*w+1}], v{vT1} offset:{4096+16*w}')
    for w in range(4):
        a(f'ds_read_b32 v{vS+w}, v{vT0} offset:{1024*w}')
    a(f'''
    s_waitcnt lgkmcnt(4)
    v_max3_f32 v{vM}, v{vQ}, v{vQ+2}, v{vQ+4}
    v_max_f32 v{vM}, v{vM}, v{vQ+6}
    ''')
    for w in range(4): a(f'v_sub_f32 v{vQ+2*w}, v{vQ+2*w}, v{vM}')
    for w in range(4): a(f'v_exp_f32 v{vQ+2*w}, v{vQ+2*w}')
    a(f'''
    s_waitcnt lgkmcnt(0)
    v_mul_f32 v{vL}, v{vQ}, v{vQ+1}
    v_mul_f32 v{vT2}, v{vQ}, v{vS}
    ''')
    for w in range(1, 4):
        a(f'v_fma_f32 v{vL}, v{vQ+2*w}, v{vQ+2*w+1}, v{vL}')
        a(f'v_fma_f32 v{vT2}, v{vQ+2*w}, v{vS+w}, v{vT2}')
    a(f'''
    s_lshl_b32 s{sA0}, s2, 11
    s_add_u32 s20, s20, s{sA0}
    s_addc_u32 s21, s21, 0
    v_mov_b32 v{vP}, v{vM}
    v_mov_b32 v{vP+1}, v{vL}
    global_store_dword v{vT0}, v{vT2}, s[20:21] {'sc1' if single else ''}
    s_mov_b64 exec, 1
    global_store_dwordx2 v{vT1}, v[{vP}:{vP+1}], s[20:21] offset:1024 {'sc1' if single else ''}
    ''')
    if single:
        a(f'''
        s_mov_b64 exec, -1
        s_waitcnt vmcnt(0)
        s_barrier
        s_cmp_lg_u32 s{sWave}, 0
        s_cbranch_scc1 L_arr
        s_lshl_b32 s{sT}, s{sHead}, 2
        s_add_u32 s{sT}, s{sT}, 64
        s_mov_b32 s{sA0}, 1
        s_atomic_add s{sA0}, s[18:19], s{sT} glc
        s_waitcnt lgkmcnt(0)
        v_mov_b32 v{vS}, s{sA0}
        v_mov_b32 v{vS+1}, 0
        ds_write_b32 v{vS+1}, v{vS} offset:4160
        s_waitcnt lgkmcnt(0)
        L_arr:
        s_barrier
        v_mov_b32 v{vS+1}, 0
        ds_read_b32 v{vS}, v{vS+1} offset:4160
        s_waitcnt lgkmcnt(0)
        v_readfirstlane_b32 s{sA0}, v{vS}
        s_cmp_lg_u32 s{sA0}, 15
        s_cbranch_scc1 L_fin
        s_lshl_b32 s{sT}, s{sSplit}, 11
        s_sub_u32 s{sK}, s20, s{sT}
        s_subb_u32 s{sK+1}, s21, 0
        s_mov_b32 s{sK+2}, 32768
        ''')
        for s in range(16):
            a(f's_mov_b32 s{sT}, {2048*s}')
            a(f'buffer_load_dwordx2 v[{vO+2*s}:{vO+1+2*s}], v{vT1}, s[{sK}:{sK+3}], s{sT} offen offset:1024 sc1')
            a(f'buffer_load_dword v{vB+s}, v{vT0}, s[{sK}:{sK+3}], s{sT} offen sc1')
        a('s_waitcnt vmcnt(0)')
        a(f'v_max3_f32 v{vM}, v{vO}, v{vO+2}, v{vO+4}')
        for s in range(3, 15, 2): a(f'v_max3_f32 v{vM}, v{vM}, v{vO+2*s}, v{vO+2+2*s}')
        a(f'v_max_f32 v{vM}, v{vM}, v{vO+30}')
        for s in range(16): a(f'v_sub_f32 v{vO+2*s}, v{vO+2*s}, v{vM}')
        for s in range(16): a(f'v_exp_f32 v{vO+2*s}, v{vO+2*s}')
        a(f'v_mul_f32 v{vL}, v{vO}, v{vO+1}\nv_mul_f32 v{vT2}, v{vO}, v{vB}')
        for s in range(1, 16):
            a(f'v_fma_f32 v{vL}, v{vO+2*s}, v{vO+1+2*s}, v{vL}\nv_fma_f32 v{vT2}, v{vO+2*s}, v{vB+s}, v{vT2}')
        a(f'''
        v_rcp_f32 v{vL}, v{vL}
        s_lshl_b32 s{sT}, s{sHead}, 9
        v_lshrrev_b32 v{vT0}, 1, v{vT0}
        v_add_u32 v{vT0}, s{sT}, v{vT0}
        v_mul_f32 v{vT2}, v{vT2}, v{vL}
        v_cvt_pk_bf16_f32 v{vT2}, v{vT2}, v{vT2}
        global_store_short v{vT0}, v{vT2}, s[16:17]
        L_fin:
        ''')
    if dbgstamps:
        a(f'''
        s_waitcnt vmcnt(0)
        s_memrealtime s[64:65]
        s_cmp_lg_u32 s{sWave}, 0
        s_cbranch_scc1 L_end
        s_waitcnt lgkmcnt(0)
        s_not_b32 s61, s60
        s_not_b32 s63, s62
        s_not_b32 s65, s64
        s_atomic_umax s61, s[18:19], 0
        s_atomic_umax s60, s[18:19], 4
        s_atomic_umax s63, s[18:19], 8
        s_atomic_umax s62, s[18:19], 12
        s_atomic_umax s65, s[18:19], 16
        s_atomic_umax s64, s[18:19], 20
        s_waitcnt lgkmcnt(0)
        ''')
    if stamps:
        a(f'''
        s_waitcnt vmcnt(0)
        s_memrealtime s[64:65]
        s_load_dwordx2 s[66:67], s[0:1], 64
        s_cmp_lg_u32 s{sWave}, 0
        s_cbranch_scc1 L_end
        s_waitcnt lgkmcnt(0)
        s_add_u32 s66, s66, 0x10000000
        s_addc_u32 s67, s67, 0
        s_lshl_b32 s3, s2, 5
        v_mov_b32 v1, s3
        v_mov_b32 v4, s60
        v_mov_b32 v5, s61
        v_mov_b32 v6, s62
        v_mov_b32 v7, s63
        v_mov_b32 v8, s64
        v_mov_b32 v9, s65
        s_getreg_b32 s44, hwreg(HW_REG_XCC_ID)
        v_mov_b32 v10, s44
        v_mov_b32 v11, 0
        global_store_dwordx4 v1, v[4:7], s[66:67]
        global_store_dwordx4 v1, v[8:11], s[66:67] offset:16
        ''')
    a('L_end:\ns_endpgm')
    for b in range(D):
        a(f'''
        L_resc{b}:
        v_mov_b32 v{vT1}, v{vT0}
        s_nop 1
        v_permlane32_swap_b32 v{vT0}, v{vT1}
        v_max_f32 v{vT0}, v{vT0}, v{vT1}
        v_mov_b32 v{vT1}, v{vT0}
        s_nop 1
        v_permlane16_swap_b32 v{vT0}, v{vT1}
        v_max3_f32 v{vT0}, v{vT0}, v{vT1}, v{vM}
        v_sub_f32 v{vT1}, v{vM}, v{vT0}
        v_exp_f32 v{vT1}, v{vT1}
        v_mov_b32 v{vM}, v{vT0}
        s_nop 0
        v_mul_f32 v{vL}, v{vL}, v{vT1}
        v_readlane_b32 s{sA0}, v{vT1}, 0
        v_readlane_b32 s{sA1}, v{vT1}, 1
        s_nop 1
        ''')
        for u in range(8):
            a(f'v_mul_f32 v{vO+4*u}, s{sA0}, v{vO+4*u}')
            a(f'v_mul_f32 v{vO+4*u+1}, s{sA1}, v{vO+4*u+1}')
        a(f's_branch L_back{b}')

    keep = len(a.o)
    a(f'.globl {comb}\n.p2align 8\n.type {comb},@function\n{comb}:')
    a('''
    s_load_dwordx2 s[4:5], s[0:1], 64
    s_load_dwordx2 s[6:7], s[0:1], 48
    s_cmp_ge_u32 s2, 16
    s_cbranch_scc1 L_cend
    v_lshlrev_b32 v1, 2, v0
    v_lshrrev_b32 v2, 7, v0
    v_lshlrev_b32 v2, 3, v2
    s_lshl_b32 s3, s2, 15
    s_waitcnt lgkmcnt(0)
    s_add_u32 s8, s4, s3
    s_addc_u32 s9, s5, 0
    s_mov_b32 s10, 32768
    s_mov_b32 s11, 0x20000
    ''')
    for s in range(16):
        a(f's_mov_b32 s12, {2048*s}')
        a(f'buffer_load_dwordx2 v[{8+2*s}:{9+2*s}], v2, s[8:11], s12 offen offset:1024')
        a(f'buffer_load_dword v{40+s}, v1, s[8:11], s12 offen')
    a('s_waitcnt vmcnt(0)')
    a('v_max3_f32 v3, v8, v10, v12')
    for s in range(3, 15, 2): a(f'v_max3_f32 v3, v3, v{8+2*s}, v{10+2*s}')
    a('v_max_f32 v3, v3, v38')
    for s in range(16): a(f'v_sub_f32 v{8+2*s}, v{8+2*s}, v3')
    for s in range(16): a(f'v_exp_f32 v{8+2*s}, v{8+2*s}')
    a('v_mul_f32 v4, v8, v9\nv_mul_f32 v5, v8, v40')
    for s in range(1, 16):
        a(f'v_fma_f32 v4, v{8+2*s}, v{9+2*s}, v4\nv_fma_f32 v5, v{8+2*s}, v{40+s}, v5')
    a('''
    v_rcp_f32 v4, v4
    s_lshl_b32 s3, s2, 9
    v_lshl_add_u32 v1, v0, 1, s3
    v_mul_f32 v5, v5, v4
    v_cvt_pk_bf16_f32 v5, v5, v5
    global_store_short v1, v5, s[6:7]
    L_cend:
    s_endpgm
    ''')
    if single: del a.o[keep:]
    body = a.text()
    out = HEADER
    if single:
        out += f'; @launch grid=(256,1,1) block=(256,1,1) lds={lds}\n'
    else:
        out += f'; @launch kernel={main} grid=(256,1,1) block=(256,1,1) lds={lds}\n'
        out += f'; @launch kernel={comb} grid=(16,1,1) block=(256,1,1) lds=0\n'
    out += '.amdgcn_target "amdgcn-amd-amdhsa--gfx950"\n.text\n' + body
    out += '.section .rodata,"a"\n' + kd(main, NV, 70) + ('' if single else kd(comb, 56, 16))
    return out

if __name__ == '__main__':
    kw = eval('dict(' + (sys.argv[2] if len(sys.argv) > 2 else '') + ')')
    open(sys.argv[1], 'w').write(gen(**kw))
```

```python
import sys, math
from gen import HEADER, NAME, G, kd, f32, CSCALE, MASKC

def gen(w=6, gran=2, wpat=None, wpatv=None, pol='nt', stamps=False, spin=1 << 20, outpol='', sleep=1, warm=True):
    a = G()
    if wpat is None:
        wpat = [w + (gran - 1 - e % gran) - (gran - 1) if False else None for e in range(4)]
        wpat = [(e // gran * gran + gran - 1 + w - e) if (e % gran == gran - 1) else (e // gran * gran - 1 + w - e) for e in range(4)]
    wpatv = wpatv or wpat
    def top(n):
        return n + (wpat if n < 128 else wpatv)[n % 4]
    main = NAME + '_kernel'
    vLane, vT0, vT1, vT2, vT3, vVoff, vSw, vPr, vFlag = 0, 1, 2, 3, 4, 5, 6, 7, 8
    vStamp = 9
    vM, vL = 10, 11
    vKo = 12
    vKr = 16
    vS = 20
    vP = 24
    vXt = 26
    vMk = 27
    vQ = 28
    vA = 44
    vB = 60
    vO = 76
    vVt = 108
    vV = 112
    NV = 176
    sK, sV = 24, 28
    sWave, sHead, sSplit, sKoff, sLds, sCnt, sC, sPl, sPh, sT, sT2, sTree = 32, 33, 34, 35, 36, 37, 38, 39, 40, 41, 42, 43
    sSt = 60
    SAREA = 65536
    SSTR = 4224
    LDS = SAREA + 4 * SSTR
    def stamp():
        if stamps:
            a(f's_memrealtime s[46:47]\ns_waitcnt lgkmcnt(0)\ns_mov_b32 s49, m0\ns_mov_b32 m0, s48\ns_nop 0\nv_writelane_b32 v{vStamp}, s46, m0\ns_add_u32 s48, s48, 1\ns_mov_b32 m0, s49')

    a(f'.globl {main}\n.p2align 8\n.type {main},@function\n{main}:')
    a('s_load_dwordx16 s[4:19], s[0:1], 0')
    a('s_load_dwordx2 s[20:21], s[0:1], 64')
    a('s_cmp_ge_u32 s2, 256\ns_cbranch_scc1 L_end')
    if stamps: a(f's_memrealtime s[{sSt}:{sSt+1}]\ns_mov_b32 s48, 0\nv_mov_b32 v{vStamp}, 0')
    a(f'''
    v_lshrrev_b32 v{vT0}, 6, v0
    v_and_b32 v{vLane}, 63, v0
    v_readfirstlane_b32 s{sWave}, v{vT0}
    s_lshr_b32 s{sHead}, s2, 4
    s_and_b32 s{sSplit}, s2, 15
    v_lshrrev_b32 v{vT0}, 4, v{vLane}            ; g
    v_and_b32 v{vT1}, 15, v{vLane}               ; i
    s_cmp_eq_u32 s{sWave}, 4
    s_cbranch_scc1 L_helper
    v_lshlrev_b32 v{vT2}, 2, v{vT0}
    v_xor_b32 v{vT2}, v{vT2}, v{vT1}
    v_lshlrev_b32 v{vT2}, 4, v{vT2}
    v_lshl_add_u32 v{vKo}, v{vT0}, 8, v{vT2}
    v_xor_b32 v{vKo+1}, 16, v{vKo}
    v_xor_b32 v{vKo+2}, 32, v{vKo}
    v_xor_b32 v{vKo+3}, 48, v{vKo}
    v_and_b32 v{vT2}, 1, v{vLane}
    v_lshlrev_b32 v{vT3}, 4, v{vT0}
    v_lshl_add_u32 v{vPr}, v{vT2}, 8, v{vT3}
    s_lshl_b32 s{sKoff}, s{sWave}, 12
    s_lshl_b32 s{sLds}, s{sWave}, 14
    s_lshl_b32 s{sT}, s2, 19
    s_lshl_b32 s{sT2}, s{sHead}, 9
    s_mov_b32 s{sK+2}, 0x80000
    s_mov_b32 s{sK+3}, 0x20000
    s_mov_b32 m0, s{sLds}
    s_or_b32 s{sTree}, s{sWave}, s{sSplit}
    s_waitcnt lgkmcnt(0)
    s_add_u32 s{sK}, s6, s{sT}
    s_addc_u32 s{sK+1}, s7, 0
    s_add_u32 s4, s4, s{sT2}
    s_addc_u32 s5, s5, 0
    ''')
    for t in range(4):
        a(f'global_load_dwordx4 v[{vQ+4*t}:{vQ+4*t+3}], v{vPr}, s[4:5] offset:{64*t}')
    a(f'''
    s_cmp_lg_u32 s{sTree}, 0
    s_cbranch_scc1 L_notree0
    s_lshl_b32 s{sT2}, s{sHead}, 8
    s_add_u32 s10, s10, s{sT2}
    s_addc_u32 s11, s11, 0
    s_add_u32 s12, s12, s{sT2}
    s_addc_u32 s13, s13, 0
    v_mov_b32 v{vMk}, 0
    global_load_ushort v{vMk}, v{vMk}, s[14:15]
    ''')
    for t in range(4):
        a(f'global_load_dwordx4 v[{vB+4*t}:{vB+4*t+3}], v{vT3}, s[10:11] offset:{64*t}')
    a(f'''
    v_lshlrev_b32 v{vT2}, 4, v{vT1}
    global_load_dwordx4 v[{vVt}:{vVt+3}], v{vT2}, s[12:13]
    L_notree0:
    ''')
    first_v = [True]
    def issue(n, rolled=False):
        if n < 128:
            k, e = n >> 2, n & 3
            if e == 0 and n > 0:
                a(f's_add_u32 m0, s{sLds}, {(k % 4) * 4096}\ns_add_u32 s{sKoff}, s{sKoff}, 16384')
            a(f'buffer_load_dwordx4 v{vKo+e}, s[{sK}:{sK+3}], s{sKoff} offen offset:{1024*e} {pol} lds')
        else:
            k, e = (n - 128) >> 2, n & 3
            if e == 0 and n > 128:
                a(f'v_add_u32 v{vVoff}, 0x4000, v{vVoff}')
            r = vV + (k % 4) * 16 + 4 * e
            a(f'buffer_load_dwordx4 v[{r}:{r+3}], v{vVoff}, s[{sV}:{sV+3}], 0 offen offset:{1024*e} {pol}')
    for n in range(top(-1) + 1): issue(n)
    a(f'''
    s_add_u32 s{sV}, s8, s{sT}
    s_addc_u32 s{sV+1}, s9, 0
    s_mov_b32 s{sV+2}, 0x80000
    s_mov_b32 s{sV+3}, 0x20000
    s_lshl_b32 s{sT}, s{sWave}, 12
    v_lshl_add_u32 v{vVoff}, v{vLane}, 4, s{sT}
    v_and_b32 v{vT2}, 3, v{vT1}
    v_lshlrev_b32 v{vT2}, 10, v{vT2}
    v_lshrrev_b32 v{vT3}, 2, v{vT1}
    v_lshl_add_u32 v{vT2}, v{vT3}, 8, v{vT2}
    v_xor_b32 v{vT3}, v{vT0}, v{vT1}
    v_lshl_add_u32 v{vT2}, v{vT3}, 4, v{vT2}
    v_add_u32 v{vKr}, s{sLds}, v{vT2}
    v_xor_b32 v{vKr+1}, 64, v{vKr}
    v_xor_b32 v{vKr+2}, 0x80, v{vKr}
    v_xor_b32 v{vKr+3}, 0xc0, v{vKr}
    v_and_b32 v{vT2}, 1, v{vLane}
    v_lshl_add_u32 v{vT2}, v{vT0}, 1, v{vT2}
    s_mul_i32 s{sT}, s{sWave}, {SSTR}
    s_add_u32 s{sT}, s{sT}, {SAREA}
    v_lshl_add_u32 v{vSw}, v{vT2}, 4, s{sT}
    s_add_u32 s{sT}, s{sT}, 128
    v_lshl_add_u32 v{vPr}, v{vT2}, 3, s{sT}
    s_mov_b32 s{sC}, {f32(CSCALE)}
    s_mov_b32 s{sPl}, 0x05040100
    s_mov_b32 s{sPh}, 0x07060302
    s_mov_b32 s44, 0x00030003
    s_mov_b32 s45, 0x00030003
    s_mov_b32 s{sCnt}, 7
    ''')
    def steps(n0, work):
        last = -1
        for n in range(n0, n0 + 4):
            t0, t1 = top(n - 1), top(n)
            if n == 128 + 16: t0 = top(n - 1)
            assert t1 >= t0, (n, t0, t1)
            if t1 == t0 and n % 2 == 0: continue
            if t1 == t0 and n < 128 and n % 4 == 1: continue
            a(f's_waitcnt vmcnt({t0 - n})')
            for j in range(t0 + 1, t1 + 1): issue(j)
            work(n - n0, last)
            last = n - n0
    def swrite(k):
        a(f's_mov_b64 exec, s[44:45]\ns_nop 1\nds_write_b128 v{vSw}, v[{vS}:{vS+3}] offset:{(k % 4) * 128}\ns_mov_b64 exec, -1')
    def kunit(k):
        def work(e, last):
            if e != 3: return
            swrite(k)
            for t in range(4):
                a(f'ds_read_b128 v[{vA+4*t}:{vA+4*t+3}], v{vKr+t} offset:{(k % 4) * 4096}')
            for t in range(4):
                a(f's_waitcnt lgkmcnt({3 - t})')
                c = '0' if t == 0 else f'v[{vS}:{vS+3}]'
                a(f'v_mfma_f32_16x16x32_bf16 v[{vS}:{vS+3}], v[{vA+4*t}:{vA+4*t+3}], v[{vQ+4*t}:{vQ+4*t+3}], {c}')
        steps(4 * k, work)
    a('L_kloop:')
    for k in range(4, 8): kunit(k)
    stamp()
    a(f'''
    v_add_u32 v{vSw}, 0x200, v{vSw}
    s_sub_u32 s{sCnt}, s{sCnt}, 1
    s_cmp_lg_u32 s{sCnt}, 0
    s_cbranch_scc1 L_kloop
    ''')
    for k in range(28, 32): kunit(k)
    stamp()
    assert top(127) <= 127 + wpatv[3]
    for j in range(top(127) + 1, 127 + wpatv[3] + 1): issue(j)
    a(f'''
    s_lshl_b32 s{sT}, s{sHead}, 2
    v_mov_b32 v{vT0}, s{sT}
    global_load_dword v{vFlag}, v{vT0}, s[18:19] sc1
    v_mov_b32 v{vXt}, 0xff800000
    s_mul_i32 s{sT}, s{sWave}, {SSTR}
    s_add_u32 s{sT}, s{sT}, {SAREA + 128}
    v_lshl_add_u32 v{vT2}, v{vLane}, 4, s{sT}
    v_lshl_add_u32 v{vT3}, v{vLane}, 3, s{sT}
    s_mov_b64 exec, s[44:45]
    ds_write_b128 v{vSw}, v[{vS}:{vS+3}] offset:512
    s_mov_b64 exec, -1
    ''')
    for j in range(4):
        a(f'ds_read_b128 v[{vA+4*j}:{vA+4*j+3}], v{vT2} offset:{1024*j}')
    a(f's_cmp_lg_u32 s{sTree}, 0\ns_cbranch_scc1 L_notree1')
    for t in range(4):
        c = '0' if t == 0 else f'v[{vS}:{vS+3}]'
        a(f'v_mfma_f32_16x16x32_bf16 v[{vS}:{vS+3}], v[{vB+4*t}:{vB+4*t+3}], v[{vQ+4*t}:{vQ+4*t+3}], {c}')
    a(f'''
    v_lshlrev_b32 v{vMk}, 16, v{vMk}
    v_sub_f32 v{vMk}, 1.0, v{vMk}
    v_mul_f32 v{vMk}, {f32(MASKC)}, v{vMk}
    s_nop 4
    v_fma_f32 v{vXt}, v{vS}, s{sC}, v{vMk}
    L_notree1:
    s_waitcnt lgkmcnt(0)
    v_max3_f32 v{vM}, v{vA}, v{vA+1}, v{vA+2}
    v_max3_f32 v{vT0}, v{vA+3}, v{vA+4}, v{vA+5}
    v_max3_f32 v{vM}, v{vM}, v{vA+6}, v{vA+7}
    v_max3_f32 v{vT0}, v{vT0}, v{vA+8}, v{vA+9}
    v_max3_f32 v{vM}, v{vM}, v{vA+10}, v{vA+11}
    v_max3_f32 v{vT0}, v{vT0}, v{vA+12}, v{vA+13}
    v_max3_f32 v{vM}, v{vM}, v{vA+14}, v{vA+15}
    v_max_f32 v{vM}, v{vM}, v{vT0}
    v_mul_f32 v{vM}, s{sC}, v{vM}
    v_max_f32 v{vM}, v{vM}, v{vXt}
    ''')
    def allreduce(op, v):
        for r in (2, 4, 8):
            a(f's_nop 1\n{op}_dpp v{v}, v{v}, v{v} row_ror:{r} row_mask:0xf bank_mask:0xf')
        a(f'''
        v_mov_b32 v{vT0}, v{v}
        s_nop 1
        v_permlane16_swap_b32 v{v}, v{vT0}
        {op} v{v}, v{v}, v{vT0}
        v_mov_b32 v{vT0}, v{v}
        s_nop 1
        v_permlane32_swap_b32 v{v}, v{vT0}
        {op} v{v}, v{v}, v{vT0}
        ''')
    allreduce('v_max_f32', vM)
    for i in range(16): a(f'v_fma_f32 v{vA+i}, v{vA+i}, s{sC}, -v{vM}')
    a(f'v_sub_f32 v{vXt}, v{vXt}, v{vM}')
    for i in range(16): a(f'v_exp_f32 v{vA+i}, v{vA+i}')
    a(f'v_exp_f32 v{vXt}, v{vXt}')
    for j in range(4):
        a(f'v_cvt_pk_bf16_f32 v{vS+(2*j)%4}, v{vA+4*j}, v{vA+4*j+1}')
        a(f'v_cvt_pk_bf16_f32 v{vS+(2*j)%4+1}, v{vA+4*j+2}, v{vA+4*j+3}')
        a(f'ds_write_b64 v{vT3}, v[{vS+(2*j)%4}:{vS+(2*j)%4+1}] offset:{512*j}')
        if j == 1: a('s_waitcnt lgkmcnt(0)')
    for st in (1, 2, 4, 8):
        for i in range(0, 16, 2 * st): a(f'v_add_f32 v{vA+i}, v{vA+i}, v{vA+i+st}')
    a(f'v_mov_b32 v{vL}, v{vA}')
    allreduce('v_add_f32', vL)
    a(f'v_add_f32 v{vL}, v{vL}, v{vXt}')
    for i in range(32): a(f'v_mov_b32 v{vO+i}, 0')
    a(f'''
    s_cmp_lg_u32 s{sTree}, 0
    s_cbranch_scc1 L_notree2
    v_readlane_b32 s{sT}, v{vXt}, 0
    v_readlane_b32 s{sT2}, v{vXt}, 1
    ''')
    for u in range(8):
        src = vVt + u // 2
        if u % 2 == 0: a(f'v_lshlrev_b32 v{vT0}, 16, v{src}')
        else: a(f'v_and_b32 v{vT0}, 0xffff0000, v{src}')
        a(f'v_mul_f32 v{vO+4*u}, s{sT}, v{vT0}\nv_mul_f32 v{vO+4*u+1}, s{sT2}, v{vT0}')
    a(f'''
    L_notree2:
    s_waitcnt lgkmcnt(0)
    s_mov_b32 s{sCnt}, 8
    L_vloop:
    ''')
    def vunit(k):
        def work(e, last):
            if last < 0: a(f'ds_read_b64 v[{vP}:{vP+1}], v{vPr} offset:{(k % 4) * 64}')
            for p in range(2):
                if not (last < 2 * p + 1 <= e): continue
                for u in range(8):
                    lo = vV + (k % 4) * 16 + 4 * (2 * p) + u // 2
                    hi = lo + 4
                    a(f'v_perm_b32 v{vB+2*u+p}, v{hi}, v{lo}, s{sPl if u % 2 == 0 else sPh}')
            if e == 3:
                a('s_waitcnt lgkmcnt(0)')
                for u in range(8):
                    a(f'v_mfma_f32_16x16x16_bf16 v[{vO+4*u}:{vO+4*u+3}], v[{vP}:{vP+1}], v[{vB+2*u}:{vB+2*u+1}], v[{vO+4*u}:{vO+4*u+3}]')
        steps(128 + 4 * k, work)
    for k in range(4, 8): vunit(k)
    stamp()
    a(f'''
    v_add_u32 v{vPr}, 0x100, v{vPr}
    s_sub_u32 s{sCnt}, s{sCnt}, 1
    s_cmp_lg_u32 s{sCnt}, 0
    s_cbranch_scc1 L_vloop
    ''')
    if stamps: a(f's_memrealtime s[{sSt+2}:{sSt+3}]')
    a(f'''
    v_lshl_add_u32 v{vT0}, v{vLane}, 5, s{sLds}
    v_lshl_add_u32 v{vT1}, v{vLane}, 3, s{sLds}
    v_lshlrev_b32 v{vT2}, 4, v{vLane}
    v_lshrrev_b32 v{vT3}, 5, v{vLane}
    v_lshlrev_b32 v{vT3}, 3, v{vT3}
    s_mov_b64 exec, 3
    ds_write_b64 v{vT1}, v[{vM}:{vL}] offset:1024
    s_mov_b64 exec, 0xffff
    ''')
    for u in range(0, 8, 2):
        for r in range(2):
            a(f'ds_write2_b32 v{vT0}, v{vO+4*u+r}, v{vO+4*u+4+r} offset0:{128*r+u} offset1:{128*r+u+1}')
    a(f'''
    s_mov_b64 exec, -1
    s_waitcnt lgkmcnt(0)
    s_barrier
    ''')
    if stamps:
        a(f'''
        s_waitcnt vmcnt(0)
        v_writelane_b32 v{vStamp}, s{sSt}, 63
        v_writelane_b32 v{vStamp}, s48, 62
        s_mov_b32 s49, 16384
        v_writelane_b32 v{vStamp}, s49, 61
        s_lshl_b32 s49, s2, 2
        s_add_u32 s49, s49, s{sWave}
        s_lshl_b32 s49, s49, 8
        v_lshl_add_u32 v{vA}, v{vLane}, 2, s49
        s_add_u32 s46, s20, 0x10100000
        s_addc_u32 s47, s21, 0
        global_store_dword v{vA}, v{vStamp}, s[46:47]
        ''')
    a(f'''
    s_cmp_lg_u32 s{sWave}, 0
    s_cbranch_scc1 L_end
    ''')
    for x in range(4):
        a(f'ds_read_b64 v[{vQ+2*x}:{vQ+2*x+1}], v{vT3} offset:{16384*x+1024}')
    for x in range(4):
        a(f'ds_read_b128 v[{vA+4*x}:{vA+4*x+3}], v{vT2} offset:{16384*x}')
    a(f'''
    s_lshl_b32 s{sT}, s2, 11
    s_add_u32 s22, s20, s{sT}
    s_addc_u32 s23, s21, 0
    v_readfirstlane_b32 s{sT2}, v{vFlag}
    s_waitcnt lgkmcnt(4)
    v_max3_f32 v{vM}, v{vQ}, v{vQ+2}, v{vQ+4}
    v_max_f32 v{vM}, v{vM}, v{vQ+6}
    ''')
    for x in range(4): a(f'v_sub_f32 v{vQ+2*x}, v{vQ+2*x}, v{vM}')
    for x in range(4): a(f'v_exp_f32 v{vQ+2*x}, v{vQ+2*x}')
    a(f'''
    s_cmp_eq_u32 s{sT2}, 0
    s_cbranch_scc1 L_flagwait
    L_flagok:
    v_mul_f32 v{vL}, v{vQ}, v{vQ+1}
    s_waitcnt lgkmcnt(0)
    ''')
    for j in range(4): a(f'v_mul_f32 v{vS+j}, v{vQ}, v{vA+j}')
    for x in range(1, 4):
        a(f'v_fma_f32 v{vL}, v{vQ+2*x}, v{vQ+2*x+1}, v{vL}')
        for j in range(4): a(f'v_fma_f32 v{vS+j}, v{vQ+2*x}, v{vA+4*x+j}, v{vS+j}')
    for j in range(4): a(f'v_min_u32 v{vS+j}, -2, v{vS+j}')
    a(f'''
    v_min_u32 v{vM}, -2, v{vM}
    v_min_u32 v{vL}, -2, v{vL}
    global_store_dwordx4 v{vT2}, v[{vS}:{vS+3}], s[22:23] sc1
    s_mov_b32 exec_lo, 1
    s_mov_b32 exec_hi, 1
    global_store_dwordx2 v{vT3}, v[{vM}:{vL}], s[22:23] offset:1024 sc1
    ''')
    def wgstamp(slot_ok):
        a(f'''
        s_waitcnt vmcnt(0)
        s_memrealtime s[{sSt+4}:{sSt+5}]
        s_waitcnt lgkmcnt(0)
        s_add_u32 s46, s20, 0x10000000
        s_addc_u32 s47, s21, 0
        s_lshl_b32 s3, s2, 5
        s_mov_b64 exec, 1
        v_mov_b32 v1, s3
        ''')
        if slot_ok:
            a(f'''
            v_mov_b32 v4, s{sSt}
            v_mov_b32 v5, s{sSt+1}
            v_mov_b32 v6, s{sSt+2}
            v_mov_b32 v7, s{sSt+3}
            s_getreg_b32 s44, hwreg(HW_REG_XCC_ID)
            v_mov_b32 v10, s44
            v_mov_b32 v11, 0
            global_store_dwordx4 v1, v[4:7], s[46:47]
            global_store_dwordx2 v1, v[10:11], s[46:47] offset:24
            s_cmp_eq_u32 s{sSplit}, 15
            s_cbranch_scc1 L_end
            ''')
        a(f'''
        v_mov_b32 v8, s{sSt+4}
        v_mov_b32 v9, s{sSt+5}
        global_store_dwordx2 v1, v[8:9], s[46:47] offset:16
        ''')
    if stamps: wgstamp(True)
    a('L_end:\ns_endpgm')
    a(f'''
    L_flagwait:
    s_mov_b32 s{sCnt}, {spin}
    s_lshl_b32 s{sT}, s{sHead}, 2
    v_mov_b32 v{vT0}, s{sT}
    L_flagspin:
    global_load_dword v{vFlag}, v{vT0}, s[18:19] sc1
    s_waitcnt vmcnt(0)
    v_readfirstlane_b32 s{sT2}, v{vFlag}
    s_sub_u32 s{sCnt}, s{sCnt}, 1
    s_cmp_eq_u32 s{sCnt}, 0
    s_cbranch_scc1 L_flagok
    s_cmp_eq_u32 s{sT2}, 0
    s_cbranch_scc1 L_flagspin
    s_branch L_flagok
    ''')
    hO = 16
    hML = 12
    a(f'''
    L_helper:
    s_cmp_lg_u32 s{sSplit}, 15
    s_cbranch_scc1 L_end
    v_lshlrev_b32 v{vT2}, 4, v{vLane}
    v_lshlrev_b32 v{vT3}, 11, v{vT1}
    v_lshrrev_b32 v5, 5, v{vLane}
    v_lshl_add_u32 v5, v5, 3, v{vT3}
    v_mov_b32 v8, -1
    v_mov_b32 v9, -1
    v_mov_b32 v10, -1
    v_mov_b32 v11, -1
    s_lshl_b32 s{sT}, s{sHead}, 15
    s_mov_b32 s{sK+2}, 0x8000
    s_mov_b32 s{sK+3}, 0x20000
    s_waitcnt lgkmcnt(0)
    s_add_u32 s{sK}, s20, s{sT}
    s_addc_u32 s{sK+1}, s21, 0
    ''')
    for s in range(16):
        if s % 2 == 0: a(f's_movk_i32 s{sT}, {2048*s}')
        a(f'buffer_store_dwordx4 v[8:11], v{vT2}, s[{sK}:{sK+3}], s{sT} offen offset:{2048*(s%2)} sc1')
    a(f'''
    s_mov_b64 exec, 0xffff
    buffer_store_dwordx4 v[8:11], v{vT3}, s[{sK}:{sK+3}], 0 offen offset:1024 sc1
    s_mov_b64 exec, 1
    s_lshl_b32 s{sT}, s{sHead}, 2
    v_mov_b32 v6, s{sT}
    v_mov_b32 v7, 1
    s_waitcnt vmcnt(0)
    global_store_dword v6, v7, s[18:19] sc1
    s_mov_b64 exec, -1
    s_lshl_b32 s{sT}, s{sHead}, 9
    v_lshl_add_u32 v6, v{vLane}, 3, s{sT}
    s_mov_b32 s{sCnt}, {spin}
    ''')
    if not warm: a('s_barrier')
    a('L_poll:')
    a(f'buffer_load_dwordx2 v[{hML}:{hML+1}], v5, s[{sK}:{sK+3}], 0 offen offset:1024 sc1')
    for s in range(16):
        if s % 2 == 0: a(f's_movk_i32 s{sT}, {2048*s}')
        a(f'buffer_load_dwordx4 v[{hO+4*s}:{hO+4*s+3}], v{vT2}, s[{sK}:{sK+3}], s{sT} offen offset:{2048*(s%2)} sc1')
    a(f'''
    s_waitcnt vmcnt(16)
    v_max_u32 v7, v{hML}, v{hML+1}
    v_mov_b32 v8, v{hML}
    ''')
    for r in (1, 2, 4, 8):
        a(f's_nop 1\nv_max_f32_dpp v8, v8, v8 row_ror:{r} row_mask:0xf bank_mask:0xf')
    a(f'''
    v_sub_f32 v8, v{hML}, v8
    v_exp_f32 v8, v8
    s_nop 0
    v_mul_f32 v9, v8, v{hML+1}
    ''')
    for r in (1, 2, 4, 8):
        a(f's_nop 1\nv_add_f32_dpp v9, v9, v9 row_ror:{r} row_mask:0xf bank_mask:0xf')
    a(f'''
    v_rcp_f32 v9, v9
    s_nop 0
    v_mul_f32 v8, v8, v9
    v_mov_b32 v80, 0
    v_mov_b32 v81, 0
    v_mov_b32 v82, 0
    v_mov_b32 v83, 0
    ''')
    for s in range(16):
        if s % 4 == 0: a(f's_waitcnt vmcnt({12 - s})')
        a(f'v_max3_u32 v7, v7, v{hO+4*s}, v{hO+4*s+1}\nv_max3_u32 v7, v7, v{hO+4*s+2}, v{hO+4*s+3}')
        for j in range(4):
            a(f'v_fmac_f32_dpp v{80+j}, v8, v{hO+4*s+j} row_newbcast:{s} row_mask:0xf bank_mask:0xf')
    a(f'''
    v_cmp_eq_u32 vcc, -1, v7
    v_cvt_pk_bf16_f32 v80, v80, v81
    v_cvt_pk_bf16_f32 v81, v82, v83
    s_cbranch_vccz L_polldone
    ''')
    if warm:
        a(f'''
        s_cmp_lg_u32 s{sCnt}, {spin}
        s_cbranch_scc1 L_nobar
        s_barrier
        L_nobar:
        ''')
    if sleep: a(f's_sleep {sleep}')
    a(f'''
    s_sub_u32 s{sCnt}, s{sCnt}, 1
    s_cmp_lg_u32 s{sCnt}, 0
    s_cbranch_scc1 L_poll
    L_polldone:
    global_store_dwordx2 v6, v[80:81], s[16:17] {outpol}
    ''')
    if stamps: wgstamp(False)
    a('s_endpgm')
    body = a.text()
    out = HEADER
    out += f'; @launch grid=(256,1,1) block=(320,1,1) lds={LDS}\n'
    out += '.amdgcn_target "amdgcn-amd-amdhsa--gfx950"\n.text\n' + body
    out += '.section .rodata,"a"\n' + kd(main, NV, 70)
    return out

if __name__ == '__main__':
    kw = eval('dict(' + (sys.argv[2] if len(sys.argv) > 2 else '') + ')')
    open(sys.argv[1], 'w').write(gen(**kw))
```

```python
import sys, math
from gen import HEADER, NAME, G, kd, f32, CSCALE, MASKC

def gen(wmax=7, depth=2, base=6, gsh=4, lo=0, hi=8, cend=14, nref=8, ref0=8, cpos=1, hsleep=1, ldpol='', pol='nt',
        stamps=False, spin=1 << 20, outpol='', sleep=1, tail='A', clrat=1):
    a = G()
    main = NAME + '_kernel'
    vLane, vT0, vT1, vT2, vT3, vVoff, vSw, vPr, vFlag, vStamp = range(10)
    vM, vL = 10, 11
    vKo = 12
    vKr = 16
    vS = 20
    vP = 24
    vXt, vMk = 26, 27
    vQ = 28
    vA = 44
    vB = 60
    vO = 76
    vVt = 108
    vV = 112
    vCt, vLv = 176, 177
    NV = 178
    sK, sV = 24, 28
    sWave, sHead, sSplit, sKoff, sLds, sCnt, sC, sPl, sPh, sT, sT2, sTree = range(32, 44)
    sSm = 44
    sPat, sTc, sTp, sNow = 58, 59, 74, 70
    sSt = 60
    SAREA, SSTR = 65536, 4224
    CTRL = SAREA + 4 * SSTR
    LDS = CTRL + 512
    FBOFF, FBSTR = 0x100000, 4352
    top = lambda n: n + wmax
    lab = [0]

    def ckpt():
        a(f'''
        s_memrealtime s[{sNow}:{sNow+1}]
        s_mov_b32 s{sTp}, s{sTc}
        v_add_u32 v{vCt}, 4, v{vCt}
        s_waitcnt lgkmcnt(0)
        s_mov_b32 s{sTc}, s{sNow}
        v_mov_b32 v{vT0}, s{sNow}
        s_mov_b64 exec, 1
        ds_write_b32 v{vCt}, v{vT0}
        s_mov_b64 exec, -1
        ''')
        if stamps:
            a(f's_mov_b32 s49, m0\ns_mov_b32 m0, s48\ns_nop 0\nv_writelane_b32 v{vStamp}, s{sNow}, m0\ns_add_u32 s48, s48, 1\ns_mov_b32 m0, s49')
    def ctrl(k):
        if k % 4 != cpos: return
        a(f'''
        ds_read_b32 v{vT0}, v{vLv}
        v_add_u32 v{vLv}, 4, v{vLv}
        s_waitcnt lgkmcnt(0)
        v_readfirstlane_b32 s72, v{vT0}
        s_sub_u32 s72, s72, s{sTp}
        s_add_u32 s73, s72, 512
        s_cmp_lt_u32 s73, 1024
        s_cselect_b32 s72, s72, 0
        s_add_i32 s72, s72, {(1 << gsh) >> 1}
        s_ashr_i32 s72, s72, {gsh}
        s_add_i32 s72, s72, {base}
        s_max_i32 s72, s72, {lo}
        s_min_i32 s72, s72, {hi}
        s_bfm_b32 s{sPat}, s72, 0
        ''')

    a(f'.globl {main}\n.p2align 8\n.type {main},@function\n{main}:')
    a('s_load_dwordx16 s[4:19], s[0:1], 0')
    a('s_load_dwordx2 s[20:21], s[0:1], 64')
    a('s_cmp_ge_u32 s2, 256\ns_cbranch_scc1 L_end')
    if stamps: a(f's_memrealtime s[{sSt}:{sSt+1}]\ns_mov_b32 s48, 0\nv_mov_b32 v{vStamp}, 0')
    a(f'''
    v_lshrrev_b32 v{vT0}, 6, v0
    v_and_b32 v{vLane}, 63, v0
    v_readfirstlane_b32 s{sWave}, v{vT0}
    s_lshr_b32 s{sHead}, s2, 4
    s_and_b32 s{sSplit}, s2, 15
    v_lshrrev_b32 v{vT0}, 4, v{vLane}            ; g
    v_and_b32 v{vT1}, 15, v{vLane}               ; i
    s_cmp_eq_u32 s{sWave}, 4
    s_cbranch_scc1 L_helper
    v_lshlrev_b32 v{vT2}, 2, v{vT0}
    v_xor_b32 v{vT2}, v{vT2}, v{vT1}
    v_lshlrev_b32 v{vT2}, 4, v{vT2}
    v_lshl_add_u32 v{vKo}, v{vT0}, 8, v{vT2}
    v_xor_b32 v{vKo+1}, 16, v{vKo}
    v_xor_b32 v{vKo+2}, 32, v{vKo}
    v_xor_b32 v{vKo+3}, 48, v{vKo}
    v_and_b32 v{vT2}, 1, v{vLane}
    v_lshlrev_b32 v{vT3}, 4, v{vT0}
    v_lshl_add_u32 v{vPr}, v{vT2}, 8, v{vT3}
    s_lshl_b32 s{sKoff}, s{sWave}, 12
    s_lshl_b32 s{sLds}, s{sWave}, 14
    s_lshl_b32 s{sT}, s2, 19
    s_lshl_b32 s{sT2}, s{sHead}, 9
    s_mov_b32 s{sK+2}, 0x80000
    s_mov_b32 s{sK+3}, 0x20000
    s_mov_b32 m0, s{sLds}
    s_or_b32 s{sTree}, s{sWave}, s{sSplit}
    s_waitcnt lgkmcnt(0)
    s_add_u32 s{sK}, s6, s{sT}
    s_addc_u32 s{sK+1}, s7, 0
    s_add_u32 s4, s4, s{sT2}
    s_addc_u32 s5, s5, 0
    ''')
    if stamps: a('s_memrealtime s[50:51]')
    for t in range(4):
        a(f'global_load_dwordx4 v[{vQ+4*t}:{vQ+4*t+3}], v{vPr}, s[4:5] offset:{64*t}')
    a(f'''
    s_cmp_lg_u32 s{sTree}, 0
    s_cbranch_scc1 L_notree0
    s_lshl_b32 s{sT2}, s{sHead}, 8
    s_add_u32 s10, s10, s{sT2}
    s_addc_u32 s11, s11, 0
    s_add_u32 s12, s12, s{sT2}
    s_addc_u32 s13, s13, 0
    v_mov_b32 v{vMk}, 0
    global_load_ushort v{vMk}, v{vMk}, s[14:15]
    ''')
    for t in range(4):
        a(f'global_load_dwordx4 v[{vB+4*t}:{vB+4*t+3}], v{vT3}, s[10:11] offset:{64*t}')
    a(f'''
    v_lshlrev_b32 v{vT2}, 4, v{vT1}
    global_load_dwordx4 v[{vVt}:{vVt+3}], v{vT2}, s[12:13]
    L_notree0:
    ''')
    def issue(n):
        e = n & 3
        if n < 128:
            if e == 0 and n > 0:
                a(f's_add_u32 m0, s{sLds}, {((n >> 2) % 4) * 4096}\ns_add_u32 s{sKoff}, s{sKoff}, 16384')
            a(f'buffer_load_dwordx4 v{vKo+e}, s[{sK}:{sK+3}], s{sKoff} offen offset:{1024*e} {pol} lds')
        else:
            if e == 0 and n > 128:
                a(f'v_add_u32 v{vVoff}, 0x4000, v{vVoff}')
            r = vV + (((n - 128) >> 2) % 4) * 16 + 4 * e
            a(f'buffer_load_dwordx4 v[{r}:{r+3}], v{vVoff}, s[{sV}:{sV+3}], 0 offen offset:{1024*e} {pol}')
    for n in range(top(-1) + 1): issue(n)
    a(f'''
    s_add_u32 s{sV}, s8, s{sT}
    s_addc_u32 s{sV+1}, s9, 0
    s_mov_b32 s{sV+2}, 0x80000
    s_mov_b32 s{sV+3}, 0x20000
    s_lshl_b32 s{sT}, s{sWave}, 12
    v_lshl_add_u32 v{vVoff}, v{vLane}, 4, s{sT}
    v_mov_b32 v{vLv}, {CTRL}
    v_lshl_add_u32 v{vT2}, v{vLane}, 3, v{vLv}
    v_mov_b32 v{vS}, 0
    v_mov_b32 v{vS+1}, 0
    ds_write_b64 v{vT2}, v[{vS}:{vS+1}]
    s_lshl_b32 s{sT}, s{sWave}, 6
    s_add_u32 s{sT}, s{sT}, {CTRL + 256 - 4}
    v_mov_b32 v{vCt}, s{sT}
    s_mov_b32 s{sPat}, {(1 << base) - 1}
    s_mov_b32 s{sTc}, 0
    s_mov_b32 s{sTp}, 0
    v_and_b32 v{vT2}, 3, v{vT1}
    v_lshlrev_b32 v{vT2}, 10, v{vT2}
    v_lshrrev_b32 v{vT3}, 2, v{vT1}
    v_lshl_add_u32 v{vT2}, v{vT3}, 8, v{vT2}
    v_xor_b32 v{vT3}, v{vT0}, v{vT1}
    v_lshl_add_u32 v{vT2}, v{vT3}, 4, v{vT2}
    v_add_u32 v{vKr}, s{sLds}, v{vT2}
    v_xor_b32 v{vKr+1}, 64, v{vKr}
    v_xor_b32 v{vKr+2}, 0x80, v{vKr}
    v_xor_b32 v{vKr+3}, 0xc0, v{vKr}
    v_and_b32 v{vT2}, 1, v{vLane}
    v_lshl_add_u32 v{vT2}, v{vT0}, 1, v{vT2}
    s_mul_i32 s{sT}, s{sWave}, {SSTR}
    s_add_u32 s{sT}, s{sT}, {SAREA}
    v_lshl_add_u32 v{vSw}, v{vT2}, 4, s{sT}
    s_add_u32 s{sT}, s{sT}, 128
    v_lshl_add_u32 v{vPr}, v{vT2}, 3, s{sT}
    s_mov_b32 s{sC}, {f32(CSCALE)}
    s_mov_b32 s{sPl}, 0x05040100
    s_mov_b32 s{sPh}, 0x07060302
    s_mov_b32 s{sSm}, 0x00030003
    s_mov_b32 s{sSm+1}, 0x00030003
    s_mov_b32 s{sCnt}, 7
    s_waitcnt lgkmcnt(0)
    s_barrier
    ''')
    if stamps:
        a(f's_memrealtime s[52:53]\ns_waitcnt vmcnt({top(-1)})\ns_memrealtime s[54:55]\ns_waitcnt vmcnt({top(-1)-3})\ns_memrealtime s[56:57]')
    def steps(n0, work):
        for n in range(n0, n0 + 4):
            a(f's_waitcnt vmcnt({wmax - 1})')
            lab[0] += 1
            for dd in range(depth):
                a(f's_bitcmp1_b32 s{sPat}, {4 * dd + n % 4}\ns_cbranch_scc0 L_w{lab[0]}\ns_waitcnt vmcnt({wmax - 2 - dd})')
            a(f'L_w{lab[0]}:')
            issue(n + wmax)
            work(n - n0)
    def kunit(k):
        def work(e):
            if e != 3: return
            a(f's_mov_b64 exec, s[{sSm}:{sSm+1}]\nds_write_b128 v{vSw}, v[{vS}:{vS+3}] offset:{(k % 4) * 128}\ns_mov_b64 exec, -1')
            for t in range(4):
                a(f'ds_read_b128 v[{vA+4*t}:{vA+4*t+3}], v{vKr+t} offset:{(k % 4) * 4096}')
            for t in range(4):
                a(f's_waitcnt lgkmcnt({3 - t})')
                c = '0' if t == 0 else f'v[{vS}:{vS+3}]'
                a(f'v_mfma_f32_16x16x32_bf16 v[{vS}:{vS+3}], v[{vA+4*t}:{vA+4*t+3}], v[{vQ+4*t}:{vQ+4*t+3}], {c}')
        steps(4 * k, work)
        ctrl(k)
    a('L_kloop:')
    for k in range(4, 8): kunit(k)
    ckpt()
    a(f'''
    v_add_u32 v{vSw}, 0x200, v{vSw}
    s_sub_u32 s{sCnt}, s{sCnt}, 1
    s_cmp_lg_u32 s{sCnt}, 0
    s_cbranch_scc1 L_kloop
    ''')
    for k in range(28, 32): kunit(k)
    ckpt()
    a(f'''
    s_lshl_b32 s{sT}, s{sHead}, 2
    v_mov_b32 v{vT0}, s{sT}
    global_load_dword v{vFlag}, v{vT0}, s[18:19] sc1
    v_mov_b32 v{vXt}, 0xff800000
    s_mul_i32 s{sT}, s{sWave}, {SSTR}
    s_add_u32 s{sT}, s{sT}, {SAREA + 128}
    v_lshl_add_u32 v{vT2}, v{vLane}, 4, s{sT}
    v_lshl_add_u32 v{vT3}, v{vLane}, 3, s{sT}
    s_mov_b64 exec, s[{sSm}:{sSm+1}]
    ds_write_b128 v{vSw}, v[{vS}:{vS+3}] offset:512
    s_mov_b64 exec, -1
    ''')
    for j in range(4):
        a(f'ds_read_b128 v[{vA+4*j}:{vA+4*j+3}], v{vT2} offset:{1024*j}')
    a(f's_cmp_lg_u32 s{sTree}, 0\ns_cbranch_scc1 L_notree1')
    for t in range(4):
        c = '0' if t == 0 else f'v[{vS}:{vS+3}]'
        a(f'v_mfma_f32_16x16x32_bf16 v[{vS}:{vS+3}], v[{vB+4*t}:{vB+4*t+3}], v[{vQ+4*t}:{vQ+4*t+3}], {c}')
    a(f'''
    v_lshlrev_b32 v{vMk}, 16, v{vMk}
    v_sub_f32 v{vMk}, 1.0, v{vMk}
    v_mul_f32 v{vMk}, {f32(MASKC)}, v{vMk}
    s_nop 4
    v_fma_f32 v{vXt}, v{vS}, s{sC}, v{vMk}
    L_notree1:
    s_waitcnt lgkmcnt(0)
    v_max3_f32 v{vM}, v{vA}, v{vA+1}, v{vA+2}
    v_max3_f32 v{vT0}, v{vA+3}, v{vA+4}, v{vA+5}
    v_max3_f32 v{vM}, v{vM}, v{vA+6}, v{vA+7}
    v_max3_f32 v{vT0}, v{vT0}, v{vA+8}, v{vA+9}
    v_max3_f32 v{vM}, v{vM}, v{vA+10}, v{vA+11}
    v_max3_f32 v{vT0}, v{vT0}, v{vA+12}, v{vA+13}
    v_max3_f32 v{vM}, v{vM}, v{vA+14}, v{vA+15}
    v_max_f32 v{vM}, v{vM}, v{vT0}
    v_mul_f32 v{vM}, s{sC}, v{vM}
    v_max_f32 v{vM}, v{vM}, v{vXt}
    ''')
    def allreduce(op, v):
        for r in (2, 4, 8):
            a(f's_nop 1\n{op}_dpp v{v}, v{v}, v{v} row_ror:{r} row_mask:0xf bank_mask:0xf')
        for sw in (16, 32):
            a(f'v_mov_b32 v{vT0}, v{v}\ns_nop 1\nv_permlane{sw}_swap_b32 v{v}, v{vT0}\n{op} v{v}, v{v}, v{vT0}')
    allreduce('v_max_f32', vM)
    for i in range(16): a(f'v_fma_f32 v{vA+i}, v{vA+i}, s{sC}, -v{vM}')
    a(f'v_sub_f32 v{vXt}, v{vXt}, v{vM}')
    for i in range(16): a(f'v_exp_f32 v{vA+i}, v{vA+i}')
    a(f'v_exp_f32 v{vXt}, v{vXt}')
    for j in range(4):
        a(f'v_cvt_pk_bf16_f32 v{vB+2*j}, v{vA+4*j}, v{vA+4*j+1}')
        a(f'v_cvt_pk_bf16_f32 v{vB+2*j+1}, v{vA+4*j+2}, v{vA+4*j+3}')
        a(f'ds_write_b64 v{vT3}, v[{vB+2*j}:{vB+2*j+1}] offset:{512*j}')
    for st in (1, 2, 4, 8):
        for i in range(0, 16, 2 * st): a(f'v_add_f32 v{vA+i}, v{vA+i}, v{vA+i+st}')
    a(f'v_mov_b32 v{vL}, v{vA}')
    allreduce('v_add_f32', vL)
    a(f'v_add_f32 v{vL}, v{vL}, v{vXt}')
    for i in range(32): a(f'v_mov_b32 v{vO+i}, 0')
    a(f'''
    s_cmp_lg_u32 s{sTree}, 0
    s_cbranch_scc1 L_notree2
    v_readlane_b32 s{sT}, v{vXt}, 0
    v_readlane_b32 s{sT2}, v{vXt}, 1
    ''')
    for u in range(8):
        src = vVt + u // 2
        if u % 2 == 0: a(f'v_lshlrev_b32 v{vT0}, 16, v{src}')
        else: a(f'v_and_b32 v{vT0}, 0xffff0000, v{src}')
        a(f'v_mul_f32 v{vO+4*u}, s{sT}, v{vT0}\nv_mul_f32 v{vO+4*u+1}, s{sT2}, v{vT0}')
    a(f'''
    L_notree2:
    s_waitcnt lgkmcnt(0)
    s_mov_b32 s{sCnt}, 8
    L_vloop:
    ''')
    def vunit(k):
        def work(e):
            if e == 0: a(f'ds_read_b64 v[{vP}:{vP+1}], v{vPr} offset:{(k % 4) * 64}')
            if e % 2 == 1:
                p = e // 2
                for u in range(8):
                    rl = vV + (k % 4) * 16 + 8 * p + u // 2
                    a(f'v_perm_b32 v{vB+2*u+p}, v{rl+4}, v{rl}, s{sPl if u % 2 == 0 else sPh}')
            if e == 3:
                a('s_waitcnt lgkmcnt(0)')
                for u in range(8):
                    a(f'v_mfma_f32_16x16x16_bf16 v[{vO+4*u}:{vO+4*u+3}], v[{vP}:{vP+1}], v[{vB+2*u}:{vB+2*u+1}], v[{vO+4*u}:{vO+4*u+3}]')
        steps(128 + 4 * k, work)
        ctrl(k)
    for k in range(4, 8): vunit(k)
    ckpt()
    a(f'''
    v_add_u32 v{vPr}, 0x100, v{vPr}
    s_sub_u32 s{sCnt}, s{sCnt}, 1
    s_cmp_lg_u32 s{sCnt}, 0
    s_cbranch_scc1 L_vloop
    ''')
    if stamps: a(f's_memrealtime s[{sSt+2}:{sSt+3}]')
    a(f'''
    v_lshl_add_u32 v{vT0}, v{vLane}, 5, s{sLds}
    v_lshl_add_u32 v{vT1}, v{vLane}, 3, s{sLds}
    v_lshlrev_b32 v{vT2}, 4, v{vLane}
    v_lshrrev_b32 v{vT3}, 5, v{vLane}
    v_lshlrev_b32 v{vT3}, 3, v{vT3}
    s_mov_b64 exec, 3
    ds_write_b64 v{vT1}, v[{vM}:{vL}] offset:1024
    s_mov_b64 exec, 0xffff
    ''')
    for u in range(0, 8, 2):
        for r in range(2):
            a(f'ds_write2_b32 v{vT0}, v{vO+4*u+r}, v{vO+4*u+4+r} offset0:{128*r+u} offset1:{128*r+u+1}')
    a(f'''
    s_mov_b64 exec, -1
    s_waitcnt lgkmcnt(0)
    s_barrier
    ''')
    def tsdump():
        a(f'''
        s_mov_b64 exec, -1
        v_writelane_b32 v{vStamp}, s50, 59
        v_writelane_b32 v{vStamp}, s52, 58
        v_writelane_b32 v{vStamp}, s54, 57
        v_writelane_b32 v{vStamp}, s56, 56
        v_writelane_b32 v{vStamp}, s{sSt}, 63
        v_writelane_b32 v{vStamp}, s48, 62
        s_mov_b32 s49, 16384
        v_writelane_b32 v{vStamp}, s49, 61
        s_lshl_b32 s49, s2, 2
        s_add_u32 s49, s49, s{sWave}
        s_lshl_b32 s49, s49, 8
        v_lshl_add_u32 v{vLv}, v{vLane}, 2, s49
        s_add_u32 s46, s20, 0x10100000
        s_addc_u32 s47, s21, 0
        global_store_dword v{vLv}, v{vStamp}, s[46:47]
        ''')
    a(f's_cmp_lg_u32 s{sWave}, 0\ns_cbranch_scc1 {"L_tsonly" if stamps else "L_end"}')
    for x in range(4):
        a(f'ds_read_b64 v[{vQ+2*x}:{vQ+2*x+1}], v{vT3} offset:{16384*x+1024}')
    for x in range(4):
        a(f'ds_read_b128 v[{vA+4*x}:{vA+4*x+3}], v{vT2} offset:{16384*x}')
    a(f'''
    s_lshl_b32 s{sT}, s2, 11
    s_add_u32 s22, s20, s{sT}
    s_addc_u32 s23, s21, 0
    v_readfirstlane_b32 s{sT2}, v{vFlag}
    s_waitcnt lgkmcnt(4)
    v_max3_f32 v{vM}, v{vQ}, v{vQ+2}, v{vQ+4}
    v_max_f32 v{vM}, v{vM}, v{vQ+6}
    ''')
    for x in range(4): a(f'v_sub_f32 v{vQ+2*x}, v{vQ+2*x}, v{vM}')
    for x in range(4): a(f'v_exp_f32 v{vQ+2*x}, v{vQ+2*x}')
    a(f'''
    s_cmp_eq_u32 s{sT2}, 0
    s_cbranch_scc1 L_flagwait
    L_flagok:
    v_mul_f32 v{vL}, v{vQ}, v{vQ+1}
    s_waitcnt lgkmcnt(0)
    ''')
    for j in range(4): a(f'v_mul_f32 v{vS+j}, v{vQ}, v{vA+j}')
    for x in range(1, 4):
        a(f'v_fma_f32 v{vL}, v{vQ+2*x}, v{vQ+2*x+1}, v{vL}')
        for j in range(4): a(f'v_fma_f32 v{vS+j}, v{vQ+2*x}, v{vA+4*x+j}, v{vS+j}')
    for j in range(4): a(f'v_min_u32 v{vS+j}, -2, v{vS+j}')
    a(f'''
    v_min_u32 v{vM}, -2, v{vM}
    v_min_u32 v{vL}, -2, v{vL}
    {'s_memrealtime s[66:67]' if stamps else ''}
    global_store_dwordx4 v{vT2}, v[{vS}:{vS+3}], s[22:23] sc1
    s_mov_b32 exec_lo, 1
    s_mov_b32 exec_hi, 1
    global_store_dwordx2 v{vT3}, v[{vM}:{vL}], s[22:23] offset:1024 sc1
    ''')
    def wgstamp(worker):
        a(f'''
        s_waitcnt vmcnt(0)
        s_memrealtime s[{sSt+4}:{sSt+5}]
        s_waitcnt lgkmcnt(0)
        s_add_u32 s46, s20, 0x10000000
        s_addc_u32 s47, s21, 0
        s_lshl_b32 s3, s2, 5
        s_mov_b64 exec, 1
        v_mov_b32 v1, s3
        s_add_u32 s68, s20, 0x10200000
        s_addc_u32 s69, s21, 0
        v_mov_b32 v12, s66
        v_mov_b32 v13, s{sSt+4}
        v_mov_b32 v14, s{sSt+2}
        v_mov_b32 v15, s{sCnt}
        global_store_dwordx4 v1, v[12:15], s[68:69] offset:{0 if worker else 16}
        ''')
        if worker:
            a(f'''
            v_mov_b32 v4, s{sSt}
            v_mov_b32 v5, s{sSt+1}
            v_mov_b32 v6, s{sSt+2}
            v_mov_b32 v7, s{sSt+3}
            s_getreg_b32 s44, hwreg(HW_REG_XCC_ID)
            v_mov_b32 v10, s44
            v_mov_b32 v11, 0
            global_store_dwordx4 v1, v[4:7], s[46:47]
            global_store_dwordx2 v1, v[10:11], s[46:47] offset:24
            s_cmp_eq_u32 s{sSplit}, s{sHead}
            s_cbranch_scc1 L_tsonly
            ''')
        a(f'''
        v_mov_b32 v16, s{sSt+4}
        v_mov_b32 v17, s{sSt+5}
        global_store_dwordx2 v1, v[16:17], s[46:47] offset:16
        ''')
    if stamps:
        wgstamp(True)
        a('L_tsonly:')
        tsdump()
    a('L_end:\ns_endpgm')
    a(f'''
    L_flagwait:
    s_mov_b32 s{sCnt}, {spin}
    s_lshl_b32 s{sT}, s{sHead}, 2
    v_mov_b32 v{vT0}, s{sT}
    L_flagspin:
    global_load_dword v{vFlag}, v{vT0}, s[18:19] sc1
    s_waitcnt vmcnt(0)
    v_readfirstlane_b32 s{sT2}, v{vFlag}
    s_sub_u32 s{sCnt}, s{sCnt}, 1
    s_cmp_eq_u32 s{sCnt}, 0
    s_cbranch_scc1 L_flagok
    s_cmp_eq_u32 s{sT2}, 0
    s_cbranch_scc1 L_flagspin
    s_branch L_flagok
    ''')
    hO, hML, hAcc = 16, 12, 80
    sU, sCur, sPrev, sClr, sGuard = 50, 51, 52, 53, 54
    a(f'''
    L_helper:
    v_lshlrev_b32 v{vT2}, 4, v{vLane}
    v_lshlrev_b32 v{vT3}, 11, v{vT1}
    v_lshrrev_b32 v5, 5, v{vLane}
    v_lshl_add_u32 v5, v5, 3, v{vT3}
    v_mov_b32 v8, -1
    v_mov_b32 v9, -1
    v_mov_b32 v10, -1
    v_mov_b32 v11, -1
    s_lshl_b32 s{sT}, s{sHead}, 2
    v_mov_b32 v6, s{sT}
    v_mov_b32 v7, 1
    s_and_b32 s{sT}, s2, 3
    s_lshl_b32 s{sT}, s{sT}, 6
    s_add_u32 s{sT}, s{sT}, {CTRL + 256}
    v_mov_b32 v85, s{sT}
    v_mov_b32 v91, {CTRL}
    v_lshlrev_b32 v86, 8, v{vLane}
    s_sub_u32 s55, s2, {ref0}
    s_lshl_b32 s{sT}, s55, 8
    v_mov_b32 v87, s{sT}
    v_mov_b32 v90, 0
    s_mov_b32 s{sU}, 1
    s_mov_b32 s{sCur}, 0
    s_mov_b32 s{sGuard}, 0x4000
    s_cmp_eq_u32 s{sSplit}, s{sHead}
    s_cselect_b32 s{sClr}, 0, 5
    s_lshl_b32 s{sT}, s{sHead}, 15
    s_mov_b32 s{sK+2}, 0x8000
    s_mov_b32 s{sK+3}, 0x20000
    s_waitcnt lgkmcnt(0)
    s_add_u32 s{sK}, s20, s{sT}
    s_addc_u32 s{sK+1}, s21, 0
    s_add_u32 s46, s20, {FBOFF}
    s_addc_u32 s47, s21, 0
    s_barrier
    L_cw:
    ds_read_b32 v89, v85
    s_waitcnt lgkmcnt(0)
    v_readfirstlane_b32 s{sT}, v89
    s_cmp_lg_u32 s{sT}, 0
    s_cbranch_scc1 L_cgo
    s_sleep {hsleep}
    s_sub_u32 s{sGuard}, s{sGuard}, 1
    s_cmp_lg_u32 s{sGuard}, 0
    s_cbranch_scc1 L_cw
    s_mov_b32 s{sU}, 99
    s_branch L_clr
    L_cgo:
    s_mov_b32 s{sPrev}, s{sCur}
    s_mov_b32 s{sCur}, s{sT}
    v_add_u32 v85, 4, v85
    v_add_u32 v91, 4, v91
    s_cmp_eq_u32 s{sU}, 1
    s_cbranch_scc1 L_noload
    s_mov_b64 exec, {(1 << nref) - 1}
    global_load_dword v90, v86, s[46:47] {ldpol}
    L_noload:
    s_add_u32 s46, s46, {FBSTR}
    s_addc_u32 s47, s47, 0
    s_cmp_ge_u32 s55, {nref}
    s_cbranch_scc1 L_nomark
    s_mov_b64 exec, 1
    global_store_dword v87, v89, s[46:47] sc1
    L_nomark:
    s_mov_b64 exec, -1
    s_waitcnt vmcnt(0)
    v_subrev_u32 v93, s{sPrev}, v90
    v_add_u32 v89, 512, v93
    v_cmp_gt_u32 vcc, 0x400, v89
    s_nop 1
    v_cndmask_b32 v92, 0, v93, vcc
    ''')
    for r in (1, 2, 4, 8):
        a(f's_nop 1\nv_add_u32_dpp v92, v92, v92 row_ror:{r} row_mask:0xf bank_mask:0xf')
    a(f'''
    v_ashrrev_i32 v92, {int(math.log2(nref))}, v92
    v_add_u32 v92, s{sPrev}, v92
    s_mov_b64 exec, 1
    ds_write_b32 v91, v92
    s_mov_b64 exec, -1
    s_add_u32 s{sU}, s{sU}, 1
    s_cmp_le_u32 s{sU}, {clrat}
    s_cbranch_scc1 L_cw
    L_clr:
    s_cmp_ge_u32 s{sClr}, 4
    s_cbranch_scc1 L_clr4
    s_lshl_b32 s{sT}, s{sClr}, 13
    buffer_store_dwordx4 v[8:11], v{vT2}, s[{sK}:{sK+3}], s{sT} offen sc1
    buffer_store_dwordx4 v[8:11], v{vT2}, s[{sK}:{sK+3}], s{sT} offen offset:2048 sc1
    s_add_u32 s{sT}, s{sT}, 4096
    buffer_store_dwordx4 v[8:11], v{vT2}, s[{sK}:{sK+3}], s{sT} offen sc1
    buffer_store_dwordx4 v[8:11], v{vT2}, s[{sK}:{sK+3}], s{sT} offen offset:2048 sc1
    s_add_u32 s{sClr}, s{sClr}, 1
    s_cmp_lg_u32 s{sClr}, 1
    s_cbranch_scc1 L_clrd
    s_mov_b64 exec, 0xffff
    buffer_store_dwordx4 v[8:11], v{vT3}, s[{sK}:{sK+3}], 0 offen offset:1024 sc1
    s_mov_b64 exec, -1
    s_branch L_clrd
    L_clr4:
    s_cmp_eq_u32 s{sClr}, 5
    s_cbranch_scc1 L_clrd
    s_waitcnt vmcnt(0)
    s_mov_b64 exec, 1
    global_store_dword v6, v7, s[18:19] sc1
    s_mov_b64 exec, -1
    s_mov_b32 s{sClr}, 5
    L_clrd:
    s_cmp_le_u32 s{sU}, {cend}
    s_cbranch_scc1 L_cw
    s_cmp_lg_u32 s{sClr}, 5
    s_cbranch_scc1 L_clr
    s_cmp_lg_u32 s{sSplit}, s{sHead}
    s_cbranch_scc1 L_end
    s_lshl_b32 s{sT}, s{sHead}, 9
    v_lshl_add_u32 v6, v{vLane}, 3, s{sT}
    s_mov_b32 s{sCnt}, {spin}
    L_poll:
    buffer_load_dwordx2 v[{hML}:{hML+1}], v5, s[{sK}:{sK+3}], 0 offen offset:1024 sc1
    ''')
    for s in range(16):
        if s % 2 == 0: a(f's_movk_i32 s{sT}, {2048*s}')
        a(f'buffer_load_dwordx4 v[{hO+4*s}:{hO+4*s+3}], v{vT2}, s[{sK}:{sK+3}], s{sT} offen offset:{2048*(s%2)} sc1')
    def weights():
        a(f'v_mov_b32 v8, v{hML}')
        for r in (1, 2, 4, 8):
            a(f's_nop 1\nv_max_f32_dpp v8, v8, v8 row_ror:{r} row_mask:0xf bank_mask:0xf')
        a(f'v_sub_f32 v8, v{hML}, v8\nv_exp_f32 v8, v8\ns_nop 0\nv_mul_f32 v9, v8, v{hML+1}')
        for r in (1, 2, 4, 8):
            a(f's_nop 1\nv_add_f32_dpp v9, v9, v9 row_ror:{r} row_mask:0xf bank_mask:0xf')
        a('v_rcp_f32 v9, v9\ns_nop 0\nv_mul_f32 v8, v8, v9')
        for j in range(4): a(f'v_mov_b32 v{hAcc+j}, 0')
    def chk(s): a(f'v_max3_u32 v7, v7, v{hO+4*s}, v{hO+4*s+1}\nv_max3_u32 v7, v7, v{hO+4*s+2}, v{hO+4*s+3}')
    def acc(s):
        for j in range(4):
            a(f'v_fmac_f32_dpp v{hAcc+j}, v8, v{hO+4*s+j} row_newbcast:{s} row_mask:0xf bank_mask:0xf')
    retry = f'''
        s_cmp_lg_u32 s{sCnt}, {spin}
        s_cbranch_scc1 L_nobar
        s_barrier
        {f's_memrealtime s[{sSt+2}:{sSt+3}]' if stamps else ''}
        L_nobar:
        {f's_sleep {sleep}' if sleep else ''}
        s_sub_u32 s{sCnt}, s{sCnt}, 1
        s_cmp_lg_u32 s{sCnt}, 0
        s_cbranch_scc1 L_poll
        '''
    a(f's_waitcnt vmcnt(16)\nv_max_u32 v7, v{hML}, v{hML+1}')
    weights()
    if tail == 'A':
        for s in range(16):
            if s % 4 == 0: a(f's_waitcnt vmcnt({12 - s})')
            chk(s); acc(s)
        a(f'''
        v_cmp_eq_u32 vcc, -1, v7
        v_cvt_pk_bf16_f32 v{hAcc}, v{hAcc}, v{hAcc+1}
        v_cvt_pk_bf16_f32 v{hAcc+1}, v{hAcc+2}, v{hAcc+3}
        s_cbranch_vccz L_polldone
        ''')
        a(retry)
    else:
        for s in range(16):
            if s % 4 == 0: a(f's_waitcnt vmcnt({12 - s})')
            chk(s)
        a(f'''
        v_cmp_eq_u32 vcc, -1, v7
        s_cbranch_vccz L_sum
        s_cmp_lg_u32 s{sCnt}, {spin}
        s_cbranch_scc1 L_nobar
        L_sum:
        ''')
        for s in range(16): acc(s)
        a(f'''
        v_cvt_pk_bf16_f32 v{hAcc}, v{hAcc}, v{hAcc+1}
        v_cvt_pk_bf16_f32 v{hAcc+1}, v{hAcc+2}, v{hAcc+3}
        s_cbranch_vccz L_polldone
        ''')
        a(retry)
    a(f'''
    L_polldone:
    {'s_memrealtime s[66:67]' if stamps else ''}
    global_store_dwordx2 v6, v[{hAcc}:{hAcc+1}], s[16:17] {outpol}
    ''')
    if stamps: wgstamp(False)
    a('s_endpgm')
    out = HEADER
    out += f'; @launch grid=(256,1,1) block=(320,1,1) lds={LDS}\n'
    out += '.amdgcn_target "amdgcn-amd-amdhsa--gfx950"\n.text\n' + a.text()
    out += '.section .rodata,"a"\n' + kd(main, NV, 76)
    return out

if __name__ == '__main__':
    kw = eval('dict(' + (sys.argv[2] if len(sys.argv) > 2 else '') + ')')
    open(sys.argv[1], 'w').write(gen(**kw))
```

```python
import sys, math
from gen import HEADER, NAME, G, kd, f32, CSCALE, MASKC

def gen(wmax=7, depth=2, base=6, gsh=4, lo=0, hi=8, cend=15, nref=8, ref0=8, cpos=2, hsleep=1, ldpol='', pol='nt',
        stamps=False, spin=1 << 20, outpol='', sleep=0, npoll=2, nat=2, baseK=None, base0=None, dbg=0, xmap=0, stpol='sc1', plpol='sc1'):
    baseK = base if baseK is None else baseK
    base0 = baseK if base0 is None else base0
    a = G()
    main = NAME + '_kernel'
    vLane, vT0, vT1, vT2, vT3, vVoff, vSw, vPr, vFlag, vStamp = range(10)
    vM, vL = 10, 11
    vKo = 12
    vKr = 16
    vS = 20
    vP = 24
    vXt, vMk = 26, 27
    vQ = 28
    vA = 44
    vB = 60
    vO = 76
    vVt = 108
    vV = 112
    vCt, vLv = 176, 177
    vRec = 24
    NV = 178
    sK, sV = 24, 28
    sWave, sHead, sSplit, sKoff, sLds, sCnt, sC, sPl, sPh, sT, sT2, sTree = range(32, 44)
    sSm = 44
    sPat, sTc, sTp, sNow = 58, 59, 74, 70
    sSt = 60
    SAREA, SSTR = 65536, 4224
    CTRL = SAREA + 4 * SSTR
    LDS = CTRL + 512
    FBOFF, FBSTR = 0x100000, 4352
    top = lambda n: n + wmax
    lab = [0]

    def ckpt():
        a(f'''
        s_memrealtime s[{sNow}:{sNow+1}]
        s_mov_b32 s{sTp}, s{sTc}
        v_add_u32 v{vCt}, 4, v{vCt}
        s_waitcnt lgkmcnt(0)
        s_mov_b32 s{sTc}, s{sNow}
        v_mov_b32 v{vT0}, s{sNow}
        s_mov_b64 exec, 1
        ds_write_b32 v{vCt}, v{vT0}
        s_mov_b64 exec, -1
        ''')
        if stamps:
            a(f's_mov_b32 s49, m0\ns_mov_b32 m0, s48\ns_nop 0\nv_writelane_b32 v{vStamp}, s{sNow}, m0\ns_add_u32 s48, s48, 1\ns_mov_b32 m0, s49')
    def ctrl(k, base):
        if k % 4 != cpos: return
        a(f'''
        ds_read_b32 v{vT0}, v{vLv}
        v_add_u32 v{vLv}, 4, v{vLv}
        s_waitcnt lgkmcnt(0)
        v_readfirstlane_b32 s72, v{vT0}
        s_sub_u32 s72, s72, s{sTp}
        s_add_u32 s73, s72, 512
        s_cmp_lt_u32 s73, 1024
        s_cselect_b32 s72, s72, 0
        s_add_i32 s72, s72, {(1 << gsh) >> 1}
        s_ashr_i32 s72, s72, {gsh}
        s_add_i32 s72, s72, {base}
        s_max_i32 s72, s72, {lo}
        s_min_i32 s72, s72, {hi}
        s_bfm_b32 s{sPat}, s72, 0
        ''')

    a(f'.globl {main}\n.p2align 8\n.type {main},@function\n{main}:')
    a('s_load_dwordx16 s[4:19], s[0:1], 0')
    a('s_load_dwordx2 s[20:21], s[0:1], 64')
    a('s_cmp_ge_u32 s2, 256\ns_cbranch_scc1 L_end')
    if stamps: a(f's_memrealtime s[{sSt}:{sSt+1}]\ns_mov_b32 s48, 0\nv_mov_b32 v{vStamp}, 0')
    a(f'''
    v_lshrrev_b32 v{vT0}, 6, v0
    v_and_b32 v{vLane}, 63, v0
    v_readfirstlane_b32 s{sWave}, v{vT0}
    ''')
    if xmap:
        a(f'''
        s_and_b32 s{sHead}, s2, 7
        s_lshl_b32 s{sHead}, s{sHead}, 1
        s_bfe_u32 s{sSplit}, s2, 0x10003
        s_add_u32 s{sHead}, s{sHead}, s{sSplit}
        s_lshr_b32 s{sSplit}, s2, 4
        s_lshl_b32 s3, s{sHead}, 4
        s_add_u32 s3, s3, s{sSplit}
        ''')
    else:
        a(f's_lshr_b32 s{sHead}, s2, 4\ns_and_b32 s{sSplit}, s2, 15\ns_mov_b32 s3, s2')
    a(f'''
    v_lshrrev_b32 v{vT0}, 4, v{vLane}            ; g
    v_and_b32 v{vT1}, 15, v{vLane}               ; i
    s_cmp_eq_u32 s{sWave}, 4
    s_cbranch_scc1 L_helper
    v_lshlrev_b32 v{vT2}, 2, v{vT0}
    v_xor_b32 v{vT2}, v{vT2}, v{vT1}
    v_lshlrev_b32 v{vT2}, 4, v{vT2}
    v_lshl_add_u32 v{vKo}, v{vT0}, 8, v{vT2}
    v_xor_b32 v{vKo+1}, 16, v{vKo}
    v_xor_b32 v{vKo+2}, 32, v{vKo}
    v_xor_b32 v{vKo+3}, 48, v{vKo}
    v_and_b32 v{vT2}, 1, v{vLane}
    v_lshlrev_b32 v{vT3}, 4, v{vT0}
    v_lshl_add_u32 v{vPr}, v{vT2}, 8, v{vT3}
    s_lshl_b32 s{sKoff}, s{sWave}, 12
    s_lshl_b32 s{sLds}, s{sWave}, 14
    s_lshl_b32 s{sT}, s3, 19
    s_lshl_b32 s{sT2}, s{sHead}, 9
    s_mov_b32 s{sK+2}, 0x80000
    s_mov_b32 s{sK+3}, 0x20000
    s_mov_b32 m0, s{sLds}
    s_or_b32 s{sTree}, s{sWave}, s{sSplit}
    s_waitcnt lgkmcnt(0)
    s_add_u32 s{sK}, s6, s{sT}
    s_addc_u32 s{sK+1}, s7, 0
    s_add_u32 s4, s4, s{sT2}
    s_addc_u32 s5, s5, 0
    ''')
    if stamps: a('s_memrealtime s[50:51]')
    for t in range(4):
        a(f'global_load_dwordx4 v[{vQ+4*t}:{vQ+4*t+3}], v{vPr}, s[4:5] offset:{64*t}')
    a(f'''
    s_cmp_lg_u32 s{sTree}, 0
    s_cbranch_scc1 L_notree0
    s_lshl_b32 s{sT2}, s{sHead}, 8
    s_add_u32 s10, s10, s{sT2}
    s_addc_u32 s11, s11, 0
    s_add_u32 s12, s12, s{sT2}
    s_addc_u32 s13, s13, 0
    v_mov_b32 v{vMk}, 0
    global_load_ushort v{vMk}, v{vMk}, s[14:15]
    ''')
    for t in range(4):
        a(f'global_load_dwordx4 v[{vB+4*t}:{vB+4*t+3}], v{vT3}, s[10:11] offset:{64*t}')
    a(f'''
    v_lshlrev_b32 v{vT2}, 4, v{vT1}
    global_load_dwordx4 v[{vVt}:{vVt+3}], v{vT2}, s[12:13]
    L_notree0:
    ''')
    def issue(n):
        e = n & 3
        if n < 128:
            if e == 0 and n > 0:
                a(f's_add_u32 m0, s{sLds}, {((n >> 2) % 4) * 4096}\ns_add_u32 s{sKoff}, s{sKoff}, 16384')
            a(f'buffer_load_dwordx4 v{vKo+e}, s[{sK}:{sK+3}], s{sKoff} offen offset:{1024*e} {pol} lds')
        else:
            if e == 0 and n > 128:
                a(f'v_add_u32 v{vVoff}, 0x4000, v{vVoff}')
            r = vV + (((n - 128) >> 2) % 4) * 16 + 4 * e
            a(f'buffer_load_dwordx4 v[{r}:{r+3}], v{vVoff}, s[{sV}:{sV+3}], 0 offen offset:{1024*e} {pol}')
    for n in range(top(-1) + 1): issue(n)
    a(f'''
    s_add_u32 s{sV}, s8, s{sT}
    s_addc_u32 s{sV+1}, s9, 0
    s_mov_b32 s{sV+2}, 0x80000
    s_mov_b32 s{sV+3}, 0x20000
    s_lshl_b32 s{sT}, s{sWave}, 12
    v_lshl_add_u32 v{vVoff}, v{vLane}, 4, s{sT}
    v_mov_b32 v{vLv}, {CTRL}
    v_lshl_add_u32 v{vT2}, v{vLane}, 3, v{vLv}
    v_mov_b32 v{vS}, 0
    v_mov_b32 v{vS+1}, 0
    ds_write_b64 v{vT2}, v[{vS}:{vS+1}]
    s_lshl_b32 s{sT}, s{sWave}, 6
    s_add_u32 s{sT}, s{sT}, {CTRL + 256 - 4}
    v_mov_b32 v{vCt}, s{sT}
    s_mov_b32 s{sPat}, {(1 << base0) - 1}
    s_mov_b32 s{sTc}, 0
    s_mov_b32 s{sTp}, 0
    v_and_b32 v{vT2}, 3, v{vT1}
    v_lshlrev_b32 v{vT2}, 10, v{vT2}
    v_lshrrev_b32 v{vT3}, 2, v{vT1}
    v_lshl_add_u32 v{vT2}, v{vT3}, 8, v{vT2}
    v_xor_b32 v{vT3}, v{vT0}, v{vT1}
    v_lshl_add_u32 v{vT2}, v{vT3}, 4, v{vT2}
    v_add_u32 v{vKr}, s{sLds}, v{vT2}
    v_xor_b32 v{vKr+1}, 64, v{vKr}
    v_xor_b32 v{vKr+2}, 0x80, v{vKr}
    v_xor_b32 v{vKr+3}, 0xc0, v{vKr}
    v_and_b32 v{vT2}, 1, v{vLane}
    v_lshl_add_u32 v{vT2}, v{vT0}, 1, v{vT2}
    s_mul_i32 s{sT}, s{sWave}, {SSTR}
    s_add_u32 s{sT}, s{sT}, {SAREA}
    v_lshl_add_u32 v{vSw}, v{vT2}, 4, s{sT}
    s_add_u32 s{sT}, s{sT}, 128
    v_lshl_add_u32 v{vPr}, v{vT2}, 3, s{sT}
    s_mov_b32 s{sC}, {f32(CSCALE)}
    s_mov_b32 s{sPl}, 0x05040100
    s_mov_b32 s{sPh}, 0x07060302
    s_mov_b32 s{sSm}, 0x00030003
    s_mov_b32 s{sSm+1}, 0x00030003
    s_mov_b32 s{sCnt}, 7
    s_waitcnt lgkmcnt(0)
    s_barrier
    ''')
    if stamps:
        a(f's_memrealtime s[52:53]\ns_waitcnt vmcnt({top(-1)})\ns_memrealtime s[54:55]\ns_waitcnt vmcnt({top(-1)-3})\ns_memrealtime s[56:57]')
    def steps(n0, work):
        for n in range(n0, n0 + 4):
            a(f's_waitcnt vmcnt({wmax - 1})')
            lab[0] += 1
            for dd in range(depth):
                a(f's_bitcmp1_b32 s{sPat}, {4 * dd + n % 4}\ns_cbranch_scc0 L_w{lab[0]}\ns_waitcnt vmcnt({wmax - 2 - dd})')
            a(f'L_w{lab[0]}:')
            issue(n + wmax)
            work(n - n0)
    def kunit(k):
        def work(e):
            if e != 3: return
            a(f's_mov_b64 exec, s[{sSm}:{sSm+1}]\nds_write_b128 v{vSw}, v[{vS}:{vS+3}] offset:{(k % 4) * 128}\ns_mov_b64 exec, -1')
            for t in range(4):
                a(f'ds_read_b128 v[{vA+4*t}:{vA+4*t+3}], v{vKr+t} offset:{(k % 4) * 4096}')
            for t in range(4):
                a(f's_waitcnt lgkmcnt({3 - t})')
                c = '0' if t == 0 else f'v[{vS}:{vS+3}]'
                a(f'v_mfma_f32_16x16x32_bf16 v[{vS}:{vS+3}], v[{vA+4*t}:{vA+4*t+3}], v[{vQ+4*t}:{vQ+4*t+3}], {c}')
        steps(4 * k, work)
        ctrl(k, baseK)
    a('L_kloop:')
    for k in range(4, 8): kunit(k)
    ckpt()
    a(f'''
    v_add_u32 v{vSw}, 0x200, v{vSw}
    s_sub_u32 s{sCnt}, s{sCnt}, 1
    s_cmp_lg_u32 s{sCnt}, 0
    s_cbranch_scc1 L_kloop
    ''')
    for k in range(28, 32): kunit(k)
    ckpt()
    a(f'''
    v_mov_b32 v{vXt}, 0xff800000
    s_mul_i32 s{sT}, s{sWave}, {SSTR}
    s_add_u32 s{sT}, s{sT}, {SAREA + 128}
    v_lshl_add_u32 v{vT2}, v{vLane}, 4, s{sT}
    v_lshl_add_u32 v{vT3}, v{vLane}, 3, s{sT}
    s_mov_b64 exec, s[{sSm}:{sSm+1}]
    ds_write_b128 v{vSw}, v[{vS}:{vS+3}] offset:512
    s_mov_b64 exec, -1
    ''')
    for j in range(4):
        a(f'ds_read_b128 v[{vA+4*j}:{vA+4*j+3}], v{vT2} offset:{1024*j}')
    a(f's_cmp_lg_u32 s{sTree}, 0\ns_cbranch_scc1 L_notree1')
    for t in range(4):
        c = '0' if t == 0 else f'v[{vS}:{vS+3}]'
        a(f'v_mfma_f32_16x16x32_bf16 v[{vS}:{vS+3}], v[{vB+4*t}:{vB+4*t+3}], v[{vQ+4*t}:{vQ+4*t+3}], {c}')
    a(f'''
    v_lshlrev_b32 v{vMk}, 16, v{vMk}
    v_sub_f32 v{vMk}, 1.0, v{vMk}
    v_mul_f32 v{vMk}, {f32(MASKC)}, v{vMk}
    s_nop 4
    v_fma_f32 v{vXt}, v{vS}, s{sC}, v{vMk}
    L_notree1:
    s_waitcnt lgkmcnt(0)
    v_max3_f32 v{vM}, v{vA}, v{vA+1}, v{vA+2}
    v_max3_f32 v{vT0}, v{vA+3}, v{vA+4}, v{vA+5}
    v_max3_f32 v{vM}, v{vM}, v{vA+6}, v{vA+7}
    v_max3_f32 v{vT0}, v{vT0}, v{vA+8}, v{vA+9}
    v_max3_f32 v{vM}, v{vM}, v{vA+10}, v{vA+11}
    v_max3_f32 v{vT0}, v{vT0}, v{vA+12}, v{vA+13}
    v_max3_f32 v{vM}, v{vM}, v{vA+14}, v{vA+15}
    v_max_f32 v{vM}, v{vM}, v{vT0}
    v_mul_f32 v{vM}, s{sC}, v{vM}
    v_max_f32 v{vM}, v{vM}, v{vXt}
    ''')
    def allreduce(op, v):
        for r in (2, 4, 8):
            a(f's_nop 1\n{op}_dpp v{v}, v{v}, v{v} row_ror:{r} row_mask:0xf bank_mask:0xf')
        for sw in (16, 32):
            a(f'v_mov_b32 v{vT0}, v{v}\ns_nop 1\nv_permlane{sw}_swap_b32 v{v}, v{vT0}\n{op} v{v}, v{v}, v{vT0}')
    allreduce('v_max_f32', vM)
    for i in range(16): a(f'v_fma_f32 v{vA+i}, v{vA+i}, s{sC}, -v{vM}')
    a(f'v_sub_f32 v{vXt}, v{vXt}, v{vM}')
    for i in range(16): a(f'v_exp_f32 v{vA+i}, v{vA+i}')
    a(f'v_exp_f32 v{vXt}, v{vXt}')
    for j in range(4):
        a(f'v_cvt_pk_bf16_f32 v{vB+2*j}, v{vA+4*j}, v{vA+4*j+1}')
        a(f'v_cvt_pk_bf16_f32 v{vB+2*j+1}, v{vA+4*j+2}, v{vA+4*j+3}')
        a(f'ds_write_b64 v{vT3}, v[{vB+2*j}:{vB+2*j+1}] offset:{512*j}')
    for st in (1, 2, 4, 8):
        for i in range(0, 16, 2 * st): a(f'v_add_f32 v{vA+i}, v{vA+i}, v{vA+i+st}')
    a(f'v_mov_b32 v{vL}, v{vA}')
    allreduce('v_add_f32', vL)
    a(f'v_add_f32 v{vL}, v{vL}, v{vXt}')
    for i in range(32): a(f'v_mov_b32 v{vO+i}, 0')
    a(f'''
    s_cmp_lg_u32 s{sTree}, 0
    s_cbranch_scc1 L_notree2
    v_readlane_b32 s{sT}, v{vXt}, 0
    v_readlane_b32 s{sT2}, v{vXt}, 1
    ''')
    for u in range(8):
        src = vVt + u // 2
        if u % 2 == 0: a(f'v_lshlrev_b32 v{vT0}, 16, v{src}')
        else: a(f'v_and_b32 v{vT0}, 0xffff0000, v{src}')
        a(f'v_mul_f32 v{vO+4*u}, s{sT}, v{vT0}\nv_mul_f32 v{vO+4*u+1}, s{sT2}, v{vT0}')
    a(f'''
    L_notree2:
    s_waitcnt lgkmcnt(0)
    s_mov_b32 s{sCnt}, 8
    L_vloop:
    ''')
    def vunit(k):
        def work(e):
            if e == 0: a(f'ds_read_b64 v[{vP}:{vP+1}], v{vPr} offset:{(k % 4) * 64}')
            if e % 2 == 1:
                p = e // 2
                for u in range(8):
                    rl = vV + (k % 4) * 16 + 8 * p + u // 2
                    a(f'v_perm_b32 v{vB+2*u+p}, v{rl+4}, v{rl}, s{sPl if u % 2 == 0 else sPh}')
            if e == 3:
                a('s_waitcnt lgkmcnt(0)')
                for u in range(8):
                    a(f'v_mfma_f32_16x16x16_bf16 v[{vO+4*u}:{vO+4*u+3}], v[{vP}:{vP+1}], v[{vB+2*u}:{vB+2*u+1}], v[{vO+4*u}:{vO+4*u+3}]')
        steps(128 + 4 * k, work)
        ctrl(k, base)
    for k in range(4, 8): vunit(k)
    ckpt()
    a(f'''
    v_add_u32 v{vPr}, 0x100, v{vPr}
    s_sub_u32 s{sCnt}, s{sCnt}, 1
    s_cmp_lg_u32 s{sCnt}, 0
    s_cbranch_scc1 L_vloop
    ''')
    if stamps: a(f's_memrealtime s[{sSt+2}:{sSt+3}]')
    a(f'''
    v_lshl_add_u32 v{vT0}, v{vLane}, 5, s{sLds}
    v_lshl_add_u32 v{vT1}, v{vLane}, 3, s{sLds}
    v_lshlrev_b32 v{vT2}, 4, v{vLane}
    v_lshrrev_b32 v{vT3}, 5, v{vLane}
    v_lshlrev_b32 v{vT3}, 3, v{vT3}
    v_mov_b32 v{vLv}, {CTRL + 128}
    s_mov_b64 exec, 3
    ds_write_b64 v{vT1}, v[{vM}:{vL}] offset:1024
    s_mov_b64 exec, 0xffff
    ''')
    for u in range(0, 8, 2):
        for r in range(2):
            a(f'ds_write2_b32 v{vT0}, v{vO+4*u+r}, v{vO+4*u+4+r} offset0:{128*r+u} offset1:{128*r+u+1}')
    a(f'''
    s_mov_b64 exec, -1
    s_waitcnt lgkmcnt(0)
    s_barrier
    ''')
    def tsdump():
        a(f'''
        s_mov_b64 exec, -1
        v_writelane_b32 v{vStamp}, s50, 59
        v_writelane_b32 v{vStamp}, s52, 58
        v_writelane_b32 v{vStamp}, s54, 57
        v_writelane_b32 v{vStamp}, s56, 56
        v_writelane_b32 v{vStamp}, s{sSt}, 63
        v_writelane_b32 v{vStamp}, s48, 62
        s_mov_b32 s49, 16384
        v_writelane_b32 v{vStamp}, s49, 61
        s_lshl_b32 s49, s3, 2
        s_add_u32 s49, s49, s{sWave}
        s_lshl_b32 s49, s49, 8
        v_lshl_add_u32 v{vLv}, v{vLane}, 2, s49
        s_add_u32 s46, s20, 0x10100000
        s_addc_u32 s47, s21, 0
        global_store_dword v{vLv}, v{vStamp}, s[46:47]
        ''')
    a(f's_cmp_lg_u32 s{sWave}, 0\ns_cbranch_scc1 {"L_tsonly" if stamps else "L_end"}')
    a(f'ds_read_b32 v{vRec+2}, v{vLv}')
    for x in range(4):
        a(f'ds_read_b64 v[{vQ+2*x}:{vQ+2*x+1}], v{vT3} offset:{16384*x+1024}')
    for x in range(4):
        a(f'ds_read_b128 v[{vA+4*x}:{vA+4*x+3}], v{vT2} offset:{16384*x}')
    a(f'''
    s_lshl_b32 s{sT}, s3, 11
    s_add_u32 s22, s20, s{sT}
    s_addc_u32 s23, s21, 0
    v_lshlrev_b32 v{vT3}, 1, v{vT3}
    s_mov_b32 s76, 0x07060503
    s_mov_b32 s77, 0x07060502
    s_mov_b32 s78, 0x07060501
    s_waitcnt lgkmcnt(4)
    v_readfirstlane_b32 s{sT2}, v{vRec+2}
    v_max3_f32 v{vM}, v{vQ}, v{vQ+2}, v{vQ+4}
    v_max_f32 v{vM}, v{vM}, v{vQ+6}
    ''')
    for x in range(4): a(f'v_sub_f32 v{vQ+2*x}, v{vQ+2*x}, v{vM}')
    for x in range(4): a(f'v_exp_f32 v{vQ+2*x}, v{vQ+2*x}')
    a(f'''
    s_cmp_eq_u32 s{sT2}, 0
    s_cbranch_scc1 L_flagwait
    L_flagok:
    v_mul_f32 v{vL}, v{vQ}, v{vQ+1}
    s_waitcnt lgkmcnt(0)
    ''')
    for j in range(4): a(f'v_mul_f32 v{vS+j}, v{vQ}, v{vA+j}')
    for x in range(1, 4):
        a(f'v_fma_f32 v{vL}, v{vQ+2*x}, v{vQ+2*x+1}, v{vL}')
        for j in range(4): a(f'v_fma_f32 v{vS+j}, v{vQ+2*x}, v{vA+4*x+j}, v{vS+j}')
    a(f'''
    v_perm_b32 v{vS}, v{vS}, v{vS+3}, s76
    v_perm_b32 v{vS+1}, v{vS+1}, v{vS+3}, s77
    v_perm_b32 v{vS+2}, v{vS+2}, v{vS+3}, s78
    v_mov_b32 v{vS+3}, v{vRec+2}
    v_mov_b32 v{vRec}, v{vM}
    v_mov_b32 v{vRec+1}, v{vL}
    {'s_memrealtime s[66:67]' if stamps else ''}
    global_store_dwordx4 v{vT2}, v[{vS}:{vS+3}], s[22:23] {stpol}
    s_mov_b32 exec_lo, 1
    s_mov_b32 exec_hi, 1
    global_store_dwordx3 v{vT3}, v[{vRec}:{vRec+2}], s[22:23] offset:1024 {stpol}
    ''')
    def wgstamp(worker):
        a(f'''
        s_waitcnt vmcnt(0)
        s_memrealtime s[{sSt+4}:{sSt+5}]
        s_waitcnt lgkmcnt(0)
        s_add_u32 s46, s20, 0x10000000
        s_addc_u32 s47, s21, 0
        s_lshl_b32 s49, s3, 5
        s_mov_b64 exec, 1
        v_mov_b32 v1, s49
        s_add_u32 s68, s20, 0x10200000
        s_addc_u32 s69, s21, 0
        v_mov_b32 v12, s66
        v_mov_b32 v13, s{sSt+4}
        v_mov_b32 v14, s{sSt+2}
        v_mov_b32 v15, s{sCnt}
        global_store_dwordx4 v1, v[12:15], s[68:69] offset:{0 if worker else 16}
        ''')
        if worker:
            a(f'''
            v_mov_b32 v4, s{sSt}
            v_mov_b32 v5, s{sSt+1}
            v_mov_b32 v6, s{sSt+2}
            v_mov_b32 v7, s{sSt+3}
            s_getreg_b32 s44, hwreg(HW_REG_XCC_ID)
            v_mov_b32 v10, s44
            v_mov_b32 v11, 0
            global_store_dwordx4 v1, v[4:7], s[46:47]
            global_store_dwordx2 v1, v[10:11], s[46:47] offset:24
            s_sub_u32 s49, s{sSplit}, s{sHead}
            s_and_b32 s49, s49, 15
            s_cmp_eq_u32 s49, 0
            s_cbranch_scc1 L_tsonly
            ''')
        a(f'''
        v_mov_b32 v16, s{sSt+4}
        v_mov_b32 v17, s{sSt+5}
        global_store_dwordx2 v1, v[16:17], s[46:47] offset:16
        ''')
    if stamps:
        wgstamp(True)
        a('L_tsonly:')
        tsdump()
    a('L_end:\ns_endpgm')
    a(f'''
    L_flagwait:
    s_mov_b32 s{sCnt}, {spin}
    L_flagspin:
    s_sleep 1
    ds_read_b32 v{vRec+2}, v{vLv}
    s_waitcnt lgkmcnt(0)
    v_readfirstlane_b32 s{sT2}, v{vRec+2}
    s_sub_u32 s{sCnt}, s{sCnt}, 1
    s_cmp_eq_u32 s{sCnt}, 0
    s_cbranch_scc1 L_flagok
    s_cmp_eq_u32 s{sT2}, 0
    s_cbranch_scc1 L_flagspin
    s_branch L_flagok
    ''')
    sU, sCur, sPrev, sTag, sGuard, sRole = 50, 51, 52, 53, 54, 56
    a(f'''
    L_helper:
    v_lshlrev_b32 v{vT2}, 4, v{vLane}
    s_lshl_b32 s{sT}, s{sHead}, 15
    s_mov_b32 s{sK+2}, 0x8000
    s_mov_b32 s{sK+3}, 0x20000
    s_sub_u32 s{sRole}, s{sSplit}, s{sHead}
    s_and_b32 s{sRole}, s{sRole}, 15
    v_lshlrev_b32 v{vT3}, 11, v{vT1}
    v_and_b32 v5, 16, v{vLane}
    v_add_u32 v5, v5, v{vT3}
    s_waitcnt lgkmcnt(0)
    s_add_u32 s{sK}, s20, s{sT}
    s_addc_u32 s{sK+1}, s21, 0
    s_barrier
    s_lshl_b32 s{sT}, s{sHead}, 2
    v_mov_b32 v6, s{sT}
    s_and_b32 s{sT}, s2, 3
    s_lshl_b32 s{sT}, s{sT}, 6
    s_add_u32 s{sT}, s{sT}, {CTRL + 256}
    v_mov_b32 v85, s{sT}
    v_mov_b32 v91, {CTRL}
    v_mov_b32 v94, {CTRL + 128}
    v_lshlrev_b32 v86, 8, v{vLane}
    s_sub_u32 s55, s2, {ref0}
    s_lshl_b32 s{sT}, s55, 8
    v_mov_b32 v87, s{sT}
    v_mov_b32 v90, 0
    v_mov_b32 v7, 0
    s_mov_b32 s{sU}, 1
    s_mov_b32 s{sCur}, 0
    s_mov_b32 s{sTag}, 0
    s_mov_b32 s{sGuard}, 0x4000
    s_add_u32 s46, s20, {FBOFF}
    s_addc_u32 s47, s21, 0
    s_cmp_lg_u32 s{sRole}, 0
    s_cbranch_scc1 L_cw
    buffer_load_dword v16, v5, s[{sK}:{sK+3}], 0 offen offset:1032 sc1
    ''')
    for s in range(16):
        if s % 2 == 0: a(f's_movk_i32 s{sT}, {2048*s}')
        a(f'buffer_load_dword v{17+s}, v{vT2}, s[{sK}:{sK+3}], s{sT} offen offset:{2048*(s%2)+12} sc1')
    a(f'''
    s_mov_b32 s{sT}, 0
    s_waitcnt vmcnt(0)
    L_pick:
    s_add_u32 s{sT}, s{sT}, 1
    s_mov_b64 s[{sSm}:{sSm+1}], 0
    ''')
    for s in range(17):
        a(f'v_cmp_eq_u32 vcc, s{sT}, v{16+s}\ns_or_b64 s[{sSm}:{sSm+1}], s[{sSm}:{sSm+1}], vcc')
    a(f'''
    s_cbranch_scc1 L_pick
    v_mov_b32 v12, s{sT}
    s_mov_b64 exec, 1
    global_store_dword v6, v12, s[18:19] sc1
    s_mov_b64 exec, -1
    L_cw:
    ds_read_b32 v89, v85
    s_waitcnt lgkmcnt(0)
    v_readfirstlane_b32 s{sT}, v89
    s_cmp_lg_u32 s{sT}, 0
    s_cbranch_scc1 L_cgo
    s_sleep {hsleep}
    s_sub_u32 s{sGuard}, s{sGuard}, 1
    s_cmp_lg_u32 s{sGuard}, 0
    s_cbranch_scc1 L_cw
    s_branch L_cend
    L_cgo:
    s_mov_b32 s{sPrev}, s{sCur}
    s_mov_b32 s{sCur}, s{sT}
    v_add_u32 v85, 4, v85
    v_add_u32 v91, 4, v91
    s_cmp_eq_u32 s{sU}, 1
    s_cbranch_scc1 L_noload
    s_mov_b64 exec, {(1 << nref) - 1}
    {'' if dbg & 1 else 'global_load_dword v90, v86, s[46:47] ' + ldpol}
    L_noload:
    s_add_u32 s46, s46, {FBSTR}
    s_addc_u32 s47, s47, 0
    s_mov_b64 exec, 1
    s_cmp_ge_u32 s55, {nref}
    s_cbranch_scc1 L_nomark
    {'' if dbg & 2 else 'global_store_dword v87, v89, s[46:47] sc1'}
    L_nomark:
    s_cmp_lg_u32 s{sU}, {nat}
    s_cbranch_scc1 L_noget
    global_load_dword v7, v6, s[18:19] sc1
    L_noget:
    s_mov_b64 exec, -1
    s_waitcnt vmcnt(0)
    v_subrev_u32 v93, s{sPrev}, v90
    v_add_u32 v89, 512, v93
    v_cmp_gt_u32 vcc, 0x400, v89
    v_readfirstlane_b32 s{sTag}, v7
    s_nop 0
    v_cndmask_b32 v92, 0, v93, vcc
    ''')
    for r in (1, 2, 4, 8):
        a(f's_nop 1\nv_add_u32_dpp v92, v92, v92 row_ror:{r} row_mask:0xf bank_mask:0xf')
    a(f'''
    v_ashrrev_i32 v92, {int(math.log2(nref))}, v92
    v_add_u32 v92, s{sPrev}, v92
    s_mov_b64 exec, 1
    ds_write_b32 v91, v92
    ds_write_b32 v94, v7
    s_mov_b64 exec, -1
    s_add_u32 s{sU}, s{sU}, 1
    s_cmp_le_u32 s{sU}, {cend}
    s_cbranch_scc1 L_cw
    L_cend:
    s_mov_b32 s{sCnt}, {spin}
    L_tagspin:
    s_cmp_lg_u32 s{sTag}, 0
    s_cbranch_scc1 L_tagok
    global_load_dword v7, v6, s[18:19] sc1
    s_waitcnt vmcnt(0)
    v_readfirstlane_b32 s{sTag}, v7
    ds_write_b32 v94, v7
    s_waitcnt lgkmcnt(0)
    s_sub_u32 s{sCnt}, s{sCnt}, 1
    s_cmp_lg_u32 s{sCnt}, 0
    s_cbranch_scc1 L_tagspin
    L_tagok:
    s_and_b32 s{sT}, s{sRole}, 3
    s_cmp_lg_u32 s{sT}, 0
    s_cbranch_scc1 L_end
    s_lshl_b32 s{sT}, s{sRole}, 6
    v_lshl_add_u32 v{vT2}, v{vT1}, 4, s{sT}
    v_lshl_add_u32 v{vT2}, v{vT0}, 11, v{vT2}
    v_add_u32 v5, v{vT0}, v{vT1}
    v_and_b32 v5, 15, v5
    v_lshlrev_b32 v5, 11, v5
    s_lshr_b32 s{sT}, s{sRole}, 3
    s_lshl_b32 s{sT}, s{sT}, 4
    v_add_u32 v5, s{sT}, v5
    s_lshl_b32 s{sT}, s{sHead}, 9
    s_lshl_b32 s{sT2}, s{sRole}, 5
    s_add_u32 s{sT}, s{sT}, s{sT2}
    v_lshl_add_u32 v6, v{vT1}, 3, s{sT}
    s_mov_b32 s{sCnt}, {spin}
    s_movk_i32 s76, 0x2000
    s_movk_i32 s77, 0x4000
    s_movk_i32 s78, 0x6000
    s_mov_b32 s79, 0x0004000c
    s_mov_b32 s80, 0x04020100
    ''')
    sets = [16, 40]
    def pissue(b):
        a(f'buffer_load_dwordx3 v[{b}:{b+2}], v5, s[{sK}:{sK+3}], 0 offen offset:1024 {plpol}')
        for j in range(4):
            a(f'buffer_load_dwordx4 v[{b+4+4*j}:{b+7+4*j}], v{vT2}, s[{sK}:{sK+3}], {"0" if j == 0 else "s%d" % (75+j)} offen {plpol}')
    def pcheck(b, after):
        a(f's_waitcnt vmcnt({after + 4})')
        a(f'v_cmp_ne_u32 s[{sSm}:{sSm+1}], s{sTag}, v{b+2}\nv_mov_b32 v8, v{b}')
        for r in (1, 2, 4, 8):
            a(f's_nop 1\nv_max_f32_dpp v8, v8, v8 row_ror:{r} row_mask:0xf bank_mask:0xf')
        a(f'v_sub_f32 v8, v{b}, v8\nv_exp_f32 v8, v8\ns_nop 0\nv_mul_f32 v9, v8, v{b+1}')
        for r in (1, 2, 4, 8):
            a(f's_nop 1\nv_add_f32_dpp v9, v9, v9 row_ror:{r} row_mask:0xf bank_mask:0xf')
        a(f'v_rcp_f32 v9, v9')
        for j in range(4): a(f'v_mov_b32 v{12+j}, 0')
        a(f'v_mul_f32 v8, v8, v9\ns_waitcnt vmcnt({after})')
        for j in range(4):
            o = b + 4 + 4 * j
            a(f'v_cmp_ne_u32 vcc, s{sTag}, v{o+3}')
            a(f'v_perm_b32 v10, v{o+1}, v{o+2}, s79')
            a(f'v_perm_b32 v10, v{o}, v10, s80')
            a(f's_or_b64 s[{sSm}:{sSm+1}], s[{sSm}:{sSm+1}], vcc')
            for x in range(3):
                a(f'v_fmac_f32_dpp v{12+x}, v8, v{o+x} row_newbcast:{4*j} row_mask:0xf bank_mask:0xf')
            a(f'v_fmac_f32_dpp v15, v8, v10 row_newbcast:{4*j} row_mask:0xf bank_mask:0xf')
        for sw in (16, 32):
            for x in range(4): a(f'v_mov_b32 v{64+x}, v{12+x}')
            a('s_nop 0')
            for x in range(4): a(f'v_permlane{sw}_swap_b32 v{12+x}, v{64+x}')
            for x in range(4): a(f'v_add_f32 v{12+x}, v{12+x}, v{64+x}')
        a(f'''
        s_cmp_eq_u64 s[{sSm}:{sSm+1}], 0
        v_cvt_pk_bf16_f32 v12, v12, v13
        v_cvt_pk_bf16_f32 v13, v14, v15
        s_cbranch_scc1 L_polldone
        ''')
    pissue(sets[0]);
    if npoll == 2: pissue(sets[1])
    a('L_poll:')
    pcheck(sets[0], 5 if npoll == 2 else 0)
    if npoll == 2:
        a(f's_cmp_eq_u32 s{sCnt}, {spin}\ns_cbranch_scc1 L_first')
        pissue(sets[0])
        a('L_second:')
        pcheck(sets[1], 5)
        a(f's_cmp_lg_u32 s{sCnt}, {spin}\ns_cbranch_scc1 L_again')
        a('s_waitcnt vmcnt(0)\ns_barrier')
        if stamps: a(f's_memrealtime s[{sSt+2}:{sSt+3}]')
        pissue(sets[0])
        a('L_again:')
        pissue(sets[1])
    else:
        a(f's_cmp_lg_u32 s{sCnt}, {spin}\ns_cbranch_scc1 L_again\ns_barrier')
        if stamps: a(f's_memrealtime s[{sSt+2}:{sSt+3}]')
        a('L_again:')
        if sleep: a(f's_sleep {sleep}')
        pissue(sets[0])
    a(f'''
    s_sub_u32 s{sCnt}, s{sCnt}, 1
    s_cmp_lg_u32 s{sCnt}, 0
    s_cbranch_scc1 L_poll
    L_polldone:
    {'s_memrealtime s[66:67]' if stamps else ''}
    s_mov_b64 exec, 0xffff
    global_store_dwordx2 v6, v[12:13], s[16:17] {outpol}
    ''')
    if stamps:
        a(f's_cmp_lg_u32 s{sRole}, 0\ns_cbranch_scc1 L_hend')
        wgstamp(False)
        a('L_hend:')
    a('s_endpgm')
    if npoll == 2:
        a('L_first:\ns_waitcnt vmcnt(0)\ns_branch L_second')
    out = HEADER
    out += f'; @launch grid=(256,1,1) block=(320,1,1) lds={LDS}\n'
    out += '.amdgcn_target "amdgcn-amd-amdhsa--gfx950"\n.text\n' + a.text()
    out += '.section .rodata,"a"\n' + kd(main, NV, 84)
    return out

if __name__ == '__main__':
    kw = eval('dict(' + (sys.argv[2] if len(sys.argv) > 2 else '') + ')')
    open(sys.argv[1], 'w').write(gen(**kw))
```

```python
import sys, math
from gen import HEADER, NAME, G, kd, f32, CSCALE, MASKC

def gen(wmax=7, depth=2, base=6, gsh=4, lo=0, hi=8, cend=15, nref=4, ref0=8, cpos=2, hsleep=1, ldpol='', pol='nt',
        stamps=False, spin=1 << 20, outpol='', sleep=0, npoll=2, nat=2, baseK=None, base0=None, dbg=0, xmap=0, stpol='sc1', plpol='sc1', S=4, m=1, swap=0, b=4, rlow=0, mw=1, rot=0, rmap=(0, 4, 1, 5, 2, 6, 3, 7), open_at=128, qpos=0, ksplit=0):
    lgS = int(math.log2(S))
    B = 16384 * S * m
    C, R = (4096 * m * S, 4096 * m) if swap else (4096 * m, 16384 * m)
    goff = [e * 1024 for e in range(4)]
    if b < 4:
        C = 1024 * b
        if rlow:
            R = 4096 * b
            goff = [(e // b) * 4096 * b * S + (e % b) * 1024 for e in range(4)]
        else:
            goff = [(e // b) * 4096 * b + (e % b) * 1024 for e in range(4)]
    vso = lambda e: '0' if goff[e] == 1024 * e else 's%d' % (84 + e)
    NREC = 0x80000 * S
    inc = lambda k: 4096 if k % m else B - 4096 * (m - 1)
    if mw > 1:
        R = 16384 * mw
        inc = lambda k: 16384 if k % mw else 16384 * mw * S - 16384 * (mw - 1)
    baseK = base if baseK is None else baseK
    base0 = baseK if base0 is None else base0
    a = G()
    main = NAME + '_kernel'
    vLane, vT0, vT1, vT2, vT3, vVoff, vSw, vPr, vFlag, vStamp = range(10)
    vM, vL = 10, 11
    vKo = 12
    vKr = 16
    vS = 20
    vP = 24
    vXt, vMk = 26, 27
    vQ = 28
    vA = 44
    vB = 60
    vO = 76
    vVt = 108
    vV = 112
    vCt, vLv = 176, 177
    vRec = 24
    NV = 178
    sK, sV = 24, 28
    sWave, sHead, sSplit, sKoff, sLds, sCnt, sC, sPl, sPh, sT, sT2, sTree = range(32, 44)
    sSm = 44
    sPat, sTc, sTp, sNow = 58, 59, 74, 70
    sSt = 60
    SAREA, SSTR = 65536, 4224
    CTRL = SAREA + 4 * SSTR
    LDS = CTRL + 512
    FBOFF, FBSTR = 0x100000, 4352
    top = lambda n: n + wmax
    lab = [0]

    def ckpt():
        a(f'''
        s_memrealtime s[{sNow}:{sNow+1}]
        s_mov_b32 s{sTp}, s{sTc}
        v_add_u32 v{vCt}, 4, v{vCt}
        s_waitcnt lgkmcnt(0)
        s_mov_b32 s{sTc}, s{sNow}
        v_mov_b32 v{vT0}, s{sNow}
        s_mov_b64 exec, 1
        ds_write_b32 v{vCt}, v{vT0}
        s_mov_b64 exec, -1
        ''')
        if stamps:
            a(f's_mov_b32 s49, m0\ns_mov_b32 m0, s48\ns_nop 0\nv_writelane_b32 v{vStamp}, s{sNow}, m0\ns_add_u32 s48, s48, 1\ns_mov_b32 m0, s49')
    def ctrl(k, base):
        if k % 4 != cpos: return
        a(f'''
        ds_read_b32 v{vT0}, v{vLv}
        v_add_u32 v{vLv}, 4, v{vLv}
        s_waitcnt lgkmcnt(0)
        v_readfirstlane_b32 s72, v{vT0}
        s_sub_u32 s72, s72, s{sTp}
        s_add_u32 s73, s72, 512
        s_cmp_lt_u32 s73, 1024
        s_cselect_b32 s72, s72, 0
        s_add_i32 s72, s72, {(1 << gsh) >> 1}
        s_ashr_i32 s72, s72, {gsh}
        s_add_i32 s72, s72, {base}
        s_max_i32 s72, s72, {lo}
        s_min_i32 s72, s72, {hi}
        s_bfm_b32 s{sPat}, s72, 0
        ''')

    a(f'.globl {main}\n.p2align 8\n.type {main},@function\n{main}:')
    a('s_load_dwordx16 s[4:19], s[0:1], 0')
    a('s_load_dwordx2 s[20:21], s[0:1], 64')
    a('s_cmp_ge_u32 s2, 256\ns_cbranch_scc1 L_end')
    if stamps: a(f's_memrealtime s[{sSt}:{sSt+1}]\ns_mov_b32 s48, 0\nv_mov_b32 v{vStamp}, 0')
    a(f'''
    v_lshrrev_b32 v{vT0}, 6, v0
    v_and_b32 v{vLane}, 63, v0
    v_readfirstlane_b32 s{sWave}, v{vT0}
    ''')
    if xmap:
        a(f'''
        s_and_b32 s{sHead}, s2, 7
        s_lshl_b32 s{sHead}, s{sHead}, 1
        s_bfe_u32 s{sSplit}, s2, 0x10003
        s_add_u32 s{sHead}, s{sHead}, s{sSplit}
        s_lshr_b32 s{sSplit}, s2, 4
        s_lshl_b32 s3, s{sHead}, 4
        s_add_u32 s3, s3, s{sSplit}
        ''')
    else:
        if rmap is None:
            a(f's_lshr_b32 s{sHead}, s2, 4\ns_and_b32 s{sSplit}, s2, 15\ns_mov_b32 s3, s2')
        else:
            tab = sum(v << (4 * i) for i, v in enumerate(rmap))
            a(f'''
            s_and_b32 s3, s2, 7
            s_lshl_b32 s3, s3, 2
            s_lshr_b32 s3, {tab}, s3
            s_and_b32 s3, s3, 7
            s_and_b32 s{sSplit}, s2, 0xf8
            s_or_b32 s3, s3, s{sSplit}
            s_lshr_b32 s{sHead}, s3, 4
            s_and_b32 s{sSplit}, s3, 15
            ''')
    a(f'''
    v_lshrrev_b32 v{vT0}, 4, v{vLane}            ; g
    v_and_b32 v{vT1}, 15, v{vLane}               ; i
    s_cmp_eq_u32 s{sWave}, 4
    s_cbranch_scc1 L_helper
    v_lshlrev_b32 v{vT2}, 2, v{vT0}
    v_xor_b32 v{vT2}, v{vT2}, v{vT1}
    v_lshlrev_b32 v{vT2}, 4, v{vT2}
    v_lshl_add_u32 v{vKo}, v{vT0}, 8, v{vT2}
    v_xor_b32 v{vKo+1}, 16, v{vKo}
    v_xor_b32 v{vKo+2}, 32, v{vKo}
    v_xor_b32 v{vKo+3}, 48, v{vKo}
    {chr(10).join(f'v_add_u32 v{vKo+e}, {goff[e] - 1024 * e}, v{vKo+e}' for e in range(4) if goff[e] != 1024 * e)}
    {chr(10).join(f's_mov_b32 s{84+e}, {goff[e] - 1024 * e}' for e in range(4) if goff[e] != 1024 * e)}
    v_and_b32 v{vT2}, 1, v{vLane}
    v_lshlrev_b32 v{vT3}, 4, v{vT0}
    v_lshl_add_u32 v{vPr}, v{vT2}, 8, v{vT3}
    s_mul_i32 s{sKoff}, s{sWave}, {C}
    s_and_b32 s{sT}, s3, {S-1}
    s_mul_i32 s{sT}, s{sT}, {R}
    s_add_u32 s{sKoff}, s{sKoff}, s{sT}
    {f's_lshr_b32 s{sT}, s3, {lgS}' if rot else ''}
    {f's_mul_i32 s{sT}, s{sT}, {rot * 16384 * S * mw}' if rot else ''}
    {f's_add_u32 s{sKoff}, s{sKoff}, s{sT}' if rot else ''}
    {f's_and_b32 s{sKoff}, s{sKoff}, {NREC - 1}' if rot else ''}
    s_mov_b32 s75, s{sKoff}
    s_lshl_b32 s{sLds}, s{sWave}, 14
    s_lshr_b32 s{sT}, s3, {lgS}
    s_lshl_b32 s{sT}, s{sT}, {19 + lgS}
    s_lshl_b32 s{sT2}, s{sHead}, 9
    s_mov_b32 s{sK+2}, {NREC}
    s_mov_b32 s{sK+3}, 0x20000
    s_mov_b32 m0, s{sLds}
    s_or_b32 s{sTree}, s{sWave}, s{sSplit}
    s_waitcnt lgkmcnt(0)
    s_add_u32 s{sK}, s6, s{sT}
    s_addc_u32 s{sK+1}, s7, 0
    s_add_u32 s4, s4, s{sT2}
    s_addc_u32 s5, s5, 0
    ''')
    if stamps: a('s_memrealtime s[50:51]')
    for n in range(qpos):
        a(f'buffer_load_dwordx4 v{vKo+n}, s[{sK}:{sK+3}], s{sKoff} offen offset:{1024*n} {pol} lds')
    for t in range(4):
        a(f'global_load_dwordx4 v[{vQ+4*t}:{vQ+4*t+3}], v{vPr}, s[4:5] offset:{64*t}')
    a(f'''
    s_cmp_lg_u32 s{sTree}, 0
    s_cbranch_scc1 L_notree0
    s_lshl_b32 s{sT2}, s{sHead}, 8
    s_add_u32 s10, s10, s{sT2}
    s_addc_u32 s11, s11, 0
    s_add_u32 s12, s12, s{sT2}
    s_addc_u32 s13, s13, 0
    v_mov_b32 v{vMk}, 0
    global_load_ushort v{vMk}, v{vMk}, s[14:15]
    ''')
    for t in range(4):
        a(f'global_load_dwordx4 v[{vB+4*t}:{vB+4*t+3}], v{vT3}, s[10:11] offset:{64*t}')
    a(f'''
    v_lshlrev_b32 v{vT2}, 4, v{vT1}
    global_load_dwordx4 v[{vVt}:{vVt+3}], v{vT2}, s[12:13]
    L_notree0:
    ''')
    def issue(n):
        e = n & 3
        if n < 128:
            if e == 0 and n > 0:
                a(f's_add_u32 m0, s{sLds}, {((n >> 2) % 4) * 4096}\ns_add_u32 s{sKoff}, s{sKoff}, {inc(n >> 2)}')
                if rot: a(f's_and_b32 s{sKoff}, s{sKoff}, {NREC - 1}')
            a(f'buffer_load_dwordx4 v{vKo+e}, s[{sK}:{sK+3}], s{sKoff} offen offset:{1024*e} {pol} lds')
        else:
            if e == 0 and n > 128:
                a(f'v_add_u32 v{vVoff}, {inc(n >> 2)}, v{vVoff}')
                if rot: a(f'v_and_b32 v{vVoff}, {NREC - 1}, v{vVoff}')
            if rot and n >= 144 and n % 16 == 0: a(f's_cmp_eq_u32 s{sCnt}, 1\ns_cselect_b32 s{sV+2}, 0, s{sV+2}')
            r = vV + (((n - 128) >> 2) % 4) * 16 + 4 * e
            a(f'buffer_load_dwordx4 v[{r}:{r+3}], v{vVoff}, s[{sV}:{sV+3}], {vso(e)} offen offset:{1024*e} {pol}')
    for n in range(qpos, top(-1) + 1): issue(n)
    a(f'''
    s_add_u32 s{sV}, s8, s{sT}
    s_addc_u32 s{sV+1}, s9, 0
    s_mov_b32 s{sV+2}, {NREC}
    s_mov_b32 s{sV+3}, 0x20000
    v_lshl_add_u32 v{vVoff}, v{vLane}, 4, s75
    v_mov_b32 v{vLv}, {CTRL}
    v_lshl_add_u32 v{vT2}, v{vLane}, 3, v{vLv}
    v_mov_b32 v{vS}, 0
    v_mov_b32 v{vS+1}, 0
    ds_write_b64 v{vT2}, v[{vS}:{vS+1}]
    s_lshl_b32 s{sT}, s{sWave}, 6
    s_add_u32 s{sT}, s{sT}, {CTRL + 256 - 4}
    v_mov_b32 v{vCt}, s{sT}
    s_mov_b32 s{sPat}, {(1 << base0) - 1}
    s_mov_b32 s{sTc}, 0
    s_mov_b32 s{sTp}, 0
    v_and_b32 v{vT2}, 3, v{vT1}
    v_lshlrev_b32 v{vT2}, 10, v{vT2}
    v_lshrrev_b32 v{vT3}, 2, v{vT1}
    v_lshl_add_u32 v{vT2}, v{vT3}, 8, v{vT2}
    v_xor_b32 v{vT3}, v{vT0}, v{vT1}
    v_lshl_add_u32 v{vT2}, v{vT3}, 4, v{vT2}
    v_add_u32 v{vKr}, s{sLds}, v{vT2}
    v_xor_b32 v{vKr+1}, 64, v{vKr}
    v_xor_b32 v{vKr+2}, 0x80, v{vKr}
    v_xor_b32 v{vKr+3}, 0xc0, v{vKr}
    v_and_b32 v{vT2}, 1, v{vLane}
    v_lshl_add_u32 v{vT2}, v{vT0}, 1, v{vT2}
    s_mul_i32 s{sT}, s{sWave}, {SSTR}
    s_add_u32 s{sT}, s{sT}, {SAREA}
    v_lshl_add_u32 v{vSw}, v{vT2}, 4, s{sT}
    s_add_u32 s{sT}, s{sT}, 128
    v_lshl_add_u32 v{vPr}, v{vT2}, 3, s{sT}
    s_mov_b32 s{sC}, {f32(CSCALE)}
    s_mov_b32 s{sPl}, 0x05040100
    s_mov_b32 s{sPh}, 0x07060302
    s_mov_b32 s{sSm}, 0x00030003
    s_mov_b32 s{sSm+1}, 0x00030003
    s_mov_b32 s{sCnt}, 7
    s_waitcnt lgkmcnt(0)
    s_barrier
    ''')
    if stamps:
        a(f's_memrealtime s[52:53]\ns_waitcnt vmcnt({top(-1)})\ns_memrealtime s[54:55]\ns_waitcnt vmcnt({top(-1)-3})\ns_memrealtime s[56:57]')
    def steps(n0, work):
        for n in range(n0, n0 + 4):
            a(f's_waitcnt vmcnt({wmax - 1})')
            lab[0] += 1
            for dd in range(0 if open_at <= n < 128 else depth):
                a(f's_bitcmp1_b32 s{sPat}, {4 * dd + n % 4}\ns_cbranch_scc0 L_w{lab[0]}\ns_waitcnt vmcnt({wmax - 2 - dd})')
            a(f'L_w{lab[0]}:')
            issue(n + wmax)
            work(n - n0)
    def kunit(k):
        def qk():
            for t in range(4):
                a(f's_waitcnt lgkmcnt({3 - t})' if not ksplit else ('s_waitcnt lgkmcnt(0)' if t == 0 else ''))
                c = '0' if t == 0 else f'v[{vS}:{vS+3}]'
                a(f'v_mfma_f32_16x16x32_bf16 v[{vS}:{vS+3}], v[{vA+4*t}:{vA+4*t+3}], v[{vQ+4*t}:{vQ+4*t+3}], {c}')
        kunit.qk = qk
        def work(e):
            if ksplit and e == 0: qk()
            if e != 3: return
            a(f's_mov_b64 exec, s[{sSm}:{sSm+1}]\nds_write_b128 v{vSw}, v[{vS}:{vS+3}] offset:{(k % 4) * 128}\ns_mov_b64 exec, -1')
            for t in range(4):
                a(f'ds_read_b128 v[{vA+4*t}:{vA+4*t+3}], v{vKr+t} offset:{(k % 4) * 4096}')
            if not ksplit: qk()
        steps(4 * k, work)
        ctrl(k, baseK)
    a('L_kloop:')
    for k in range(4, 8): kunit(k)
    ckpt()
    a(f'''
    v_add_u32 v{vSw}, 0x200, v{vSw}
    s_sub_u32 s{sCnt}, s{sCnt}, 1
    s_cmp_lg_u32 s{sCnt}, 0
    s_cbranch_scc1 L_kloop
    ''')
    for k in range(28, 32): kunit(k)
    if ksplit: kunit.qk()
    ckpt()
    a(f'''
    v_mov_b32 v{vXt}, 0xff800000
    s_mul_i32 s{sT}, s{sWave}, {SSTR}
    s_add_u32 s{sT}, s{sT}, {SAREA + 128}
    v_lshl_add_u32 v{vT2}, v{vLane}, 4, s{sT}
    v_lshl_add_u32 v{vT3}, v{vLane}, 3, s{sT}
    s_mov_b64 exec, s[{sSm}:{sSm+1}]
    ds_write_b128 v{vSw}, v[{vS}:{vS+3}] offset:512
    s_mov_b64 exec, -1
    ''')
    for j in range(4):
        a(f'ds_read_b128 v[{vA+4*j}:{vA+4*j+3}], v{vT2} offset:{1024*j}')
    a(f's_cmp_lg_u32 s{sTree}, 0\ns_cbranch_scc1 L_notree1')
    for t in range(4):
        c = '0' if t == 0 else f'v[{vS}:{vS+3}]'
        a(f'v_mfma_f32_16x16x32_bf16 v[{vS}:{vS+3}], v[{vB+4*t}:{vB+4*t+3}], v[{vQ+4*t}:{vQ+4*t+3}], {c}')
    a(f'''
    v_lshlrev_b32 v{vMk}, 16, v{vMk}
    v_sub_f32 v{vMk}, 1.0, v{vMk}
    v_mul_f32 v{vMk}, {f32(MASKC)}, v{vMk}
    s_nop 4
    v_fma_f32 v{vXt}, v{vS}, s{sC}, v{vMk}
    L_notree1:
    s_waitcnt lgkmcnt(0)
    v_max3_f32 v{vM}, v{vA}, v{vA+1}, v{vA+2}
    v_max3_f32 v{vT0}, v{vA+3}, v{vA+4}, v{vA+5}
    v_max3_f32 v{vM}, v{vM}, v{vA+6}, v{vA+7}
    v_max3_f32 v{vT0}, v{vT0}, v{vA+8}, v{vA+9}
    v_max3_f32 v{vM}, v{vM}, v{vA+10}, v{vA+11}
    v_max3_f32 v{vT0}, v{vT0}, v{vA+12}, v{vA+13}
    v_max3_f32 v{vM}, v{vM}, v{vA+14}, v{vA+15}
    v_max_f32 v{vM}, v{vM}, v{vT0}
    v_mul_f32 v{vM}, s{sC}, v{vM}
    v_max_f32 v{vM}, v{vM}, v{vXt}
    ''')
    def allreduce(op, v):
        for r in (2, 4, 8):
            a(f's_nop 1\n{op}_dpp v{v}, v{v}, v{v} row_ror:{r} row_mask:0xf bank_mask:0xf')
        for sw in (16, 32):
            a(f'v_mov_b32 v{vT0}, v{v}\ns_nop 1\nv_permlane{sw}_swap_b32 v{v}, v{vT0}\n{op} v{v}, v{v}, v{vT0}')
    allreduce('v_max_f32', vM)
    for i in range(16): a(f'v_fma_f32 v{vA+i}, v{vA+i}, s{sC}, -v{vM}')
    a(f'v_sub_f32 v{vXt}, v{vXt}, v{vM}')
    for i in range(16): a(f'v_exp_f32 v{vA+i}, v{vA+i}')
    a(f'v_exp_f32 v{vXt}, v{vXt}')
    for j in range(4):
        a(f'v_cvt_pk_bf16_f32 v{vB+2*j}, v{vA+4*j}, v{vA+4*j+1}')
        a(f'v_cvt_pk_bf16_f32 v{vB+2*j+1}, v{vA+4*j+2}, v{vA+4*j+3}')
        a(f'ds_write_b64 v{vT3}, v[{vB+2*j}:{vB+2*j+1}] offset:{512*j}')
    for st in (1, 2, 4, 8):
        for i in range(0, 16, 2 * st): a(f'v_add_f32 v{vA+i}, v{vA+i}, v{vA+i+st}')
    a(f'v_mov_b32 v{vL}, v{vA}')
    allreduce('v_add_f32', vL)
    a(f'v_add_f32 v{vL}, v{vL}, v{vXt}')
    for i in range(32): a(f'v_mov_b32 v{vO+i}, 0')
    a(f'''
    s_cmp_lg_u32 s{sTree}, 0
    s_cbranch_scc1 L_notree2
    v_readlane_b32 s{sT}, v{vXt}, 0
    v_readlane_b32 s{sT2}, v{vXt}, 1
    ''')
    for u in range(8):
        src = vVt + u // 2
        if u % 2 == 0: a(f'v_lshlrev_b32 v{vT0}, 16, v{src}')
        else: a(f'v_and_b32 v{vT0}, 0xffff0000, v{src}')
        a(f'v_mul_f32 v{vO+4*u}, s{sT}, v{vT0}\nv_mul_f32 v{vO+4*u+1}, s{sT2}, v{vT0}')
    a(f'''
    L_notree2:
    s_waitcnt lgkmcnt(0)
    s_mov_b32 s{sCnt}, 8
    L_vloop:
    ''')
    def vunit(k):
        def work(e):
            if e == 0: a(f'ds_read_b64 v[{vP}:{vP+1}], v{vPr} offset:{(k % 4) * 64}')
            if e % 2 == 1:
                p = e // 2
                for u in range(8):
                    rl = vV + (k % 4) * 16 + 8 * p + u // 2
                    a(f'v_perm_b32 v{vB+2*u+p}, v{rl+4}, v{rl}, s{sPl if u % 2 == 0 else sPh}')
            if e == 3:
                a('s_waitcnt lgkmcnt(0)')
                for u in range(8):
                    a(f'v_mfma_f32_16x16x16_bf16 v[{vO+4*u}:{vO+4*u+3}], v[{vP}:{vP+1}], v[{vB+2*u}:{vB+2*u+1}], v[{vO+4*u}:{vO+4*u+3}]')
        steps(128 + 4 * k, work)
        ctrl(k, base)
    for k in range(4, 8): vunit(k)
    ckpt()
    a(f'''
    v_add_u32 v{vPr}, 0x100, v{vPr}
    s_sub_u32 s{sCnt}, s{sCnt}, 1
    s_cmp_lg_u32 s{sCnt}, 0
    s_cbranch_scc1 L_vloop
    ''')
    if stamps: a(f's_memrealtime s[{sSt+2}:{sSt+3}]')
    a(f'''
    v_lshl_add_u32 v{vT0}, v{vLane}, 5, s{sLds}
    v_lshl_add_u32 v{vT1}, v{vLane}, 3, s{sLds}
    v_lshlrev_b32 v{vT2}, 4, v{vLane}
    v_lshrrev_b32 v{vT3}, 5, v{vLane}
    v_lshlrev_b32 v{vT3}, 3, v{vT3}
    v_mov_b32 v{vLv}, {CTRL + 128}
    s_mov_b64 exec, 3
    ds_write_b64 v{vT1}, v[{vM}:{vL}] offset:1024
    s_mov_b64 exec, 0xffff
    ''')
    for u in range(0, 8, 2):
        for r in range(2):
            a(f'ds_write2_b32 v{vT0}, v{vO+4*u+r}, v{vO+4*u+4+r} offset0:{128*r+u} offset1:{128*r+u+1}')
    a(f'''
    s_mov_b64 exec, -1
    s_waitcnt lgkmcnt(0)
    s_barrier
    ''')
    def tsdump():
        a(f'''
        s_mov_b64 exec, -1
        v_writelane_b32 v{vStamp}, s50, 59
        v_writelane_b32 v{vStamp}, s52, 58
        v_writelane_b32 v{vStamp}, s54, 57
        v_writelane_b32 v{vStamp}, s56, 56
        v_writelane_b32 v{vStamp}, s{sSt}, 63
        v_writelane_b32 v{vStamp}, s48, 62
        s_mov_b32 s49, 16384
        v_writelane_b32 v{vStamp}, s49, 61
        s_lshl_b32 s49, s3, 2
        s_add_u32 s49, s49, s{sWave}
        s_lshl_b32 s49, s49, 8
        v_lshl_add_u32 v{vLv}, v{vLane}, 2, s49
        s_add_u32 s46, s20, 0x10100000
        s_addc_u32 s47, s21, 0
        global_store_dword v{vLv}, v{vStamp}, s[46:47]
        ''')
    a(f's_cmp_lg_u32 s{sWave}, 0\ns_cbranch_scc1 {"L_tsonly" if stamps else "L_end"}')
    a(f'ds_read_b32 v{vRec+2}, v{vLv}')
    for x in range(4):
        a(f'ds_read_b64 v[{vQ+2*x}:{vQ+2*x+1}], v{vT3} offset:{16384*x+1024}')
    for x in range(4):
        a(f'ds_read_b128 v[{vA+4*x}:{vA+4*x+3}], v{vT2} offset:{16384*x}')
    a(f'''
    s_lshl_b32 s{sT}, s3, 11
    s_add_u32 s22, s20, s{sT}
    s_addc_u32 s23, s21, 0
    v_lshlrev_b32 v{vT3}, 1, v{vT3}
    s_mov_b32 s76, 0x07060503
    s_mov_b32 s77, 0x07060502
    s_mov_b32 s78, 0x07060501
    s_waitcnt lgkmcnt(4)
    v_readfirstlane_b32 s{sT2}, v{vRec+2}
    v_max3_f32 v{vM}, v{vQ}, v{vQ+2}, v{vQ+4}
    v_max_f32 v{vM}, v{vM}, v{vQ+6}
    ''')
    for x in range(4): a(f'v_sub_f32 v{vQ+2*x}, v{vQ+2*x}, v{vM}')
    for x in range(4): a(f'v_exp_f32 v{vQ+2*x}, v{vQ+2*x}')
    a(f'''
    s_cmp_eq_u32 s{sT2}, 0
    s_cbranch_scc1 L_flagwait
    L_flagok:
    v_mul_f32 v{vL}, v{vQ}, v{vQ+1}
    s_waitcnt lgkmcnt(0)
    ''')
    for j in range(4): a(f'v_mul_f32 v{vS+j}, v{vQ}, v{vA+j}')
    for x in range(1, 4):
        a(f'v_fma_f32 v{vL}, v{vQ+2*x}, v{vQ+2*x+1}, v{vL}')
        for j in range(4): a(f'v_fma_f32 v{vS+j}, v{vQ+2*x}, v{vA+4*x+j}, v{vS+j}')
    a(f'''
    v_perm_b32 v{vS}, v{vS}, v{vS+3}, s76
    v_perm_b32 v{vS+1}, v{vS+1}, v{vS+3}, s77
    v_perm_b32 v{vS+2}, v{vS+2}, v{vS+3}, s78
    v_mov_b32 v{vS+3}, v{vRec+2}
    v_mov_b32 v{vRec}, v{vM}
    v_mov_b32 v{vRec+1}, v{vL}
    {'s_memrealtime s[66:67]' if stamps else ''}
    global_store_dwordx4 v{vT2}, v[{vS}:{vS+3}], s[22:23] {stpol}
    s_mov_b32 exec_lo, 1
    s_mov_b32 exec_hi, 1
    global_store_dwordx3 v{vT3}, v[{vRec}:{vRec+2}], s[22:23] offset:1024 {stpol}
    ''')
    def wgstamp(worker):
        a(f'''
        s_waitcnt vmcnt(0)
        s_memrealtime s[{sSt+4}:{sSt+5}]
        s_waitcnt lgkmcnt(0)
        s_add_u32 s46, s20, 0x10000000
        s_addc_u32 s47, s21, 0
        s_lshl_b32 s49, s3, 5
        s_mov_b64 exec, 1
        v_mov_b32 v1, s49
        s_add_u32 s68, s20, 0x10200000
        s_addc_u32 s69, s21, 0
        v_mov_b32 v12, s66
        v_mov_b32 v13, s{sSt+4}
        v_mov_b32 v14, s{sSt+2}
        v_mov_b32 v15, s{sCnt}
        global_store_dwordx4 v1, v[12:15], s[68:69] offset:{0 if worker else 16}
        ''')
        if worker:
            a(f'''
            v_mov_b32 v4, s{sSt}
            v_mov_b32 v5, s{sSt+1}
            v_mov_b32 v6, s{sSt+2}
            v_mov_b32 v7, s{sSt+3}
            s_getreg_b32 s44, hwreg(HW_REG_XCC_ID)
            v_mov_b32 v10, s44
            v_mov_b32 v11, 0
            global_store_dwordx4 v1, v[4:7], s[46:47]
            global_store_dwordx2 v1, v[10:11], s[46:47] offset:24
            s_sub_u32 s49, s{sSplit}, s{sHead}
            s_and_b32 s49, s49, 15
            s_cmp_eq_u32 s49, 0
            s_cbranch_scc1 L_tsonly
            ''')
        a(f'''
        v_mov_b32 v16, s{sSt+4}
        v_mov_b32 v17, s{sSt+5}
        global_store_dwordx2 v1, v[16:17], s[46:47] offset:16
        ''')
    if stamps:
        wgstamp(True)
        a('L_tsonly:')
        tsdump()
    a('L_end:\ns_endpgm')
    a(f'''
    L_flagwait:
    s_mov_b32 s{sCnt}, {spin}
    L_flagspin:
    s_sleep 1
    ds_read_b32 v{vRec+2}, v{vLv}
    s_waitcnt lgkmcnt(0)
    v_readfirstlane_b32 s{sT2}, v{vRec+2}
    s_sub_u32 s{sCnt}, s{sCnt}, 1
    s_cmp_eq_u32 s{sCnt}, 0
    s_cbranch_scc1 L_flagok
    s_cmp_eq_u32 s{sT2}, 0
    s_cbranch_scc1 L_flagspin
    s_branch L_flagok
    ''')
    sU, sCur, sPrev, sTag, sGuard, sRole = 50, 51, 52, 53, 54, 56
    a(f'''
    L_helper:
    v_lshlrev_b32 v{vT2}, 4, v{vLane}
    s_lshl_b32 s{sT}, s{sHead}, 15
    s_mov_b32 s{sK+2}, 0x8000
    s_mov_b32 s{sK+3}, 0x20000
    s_sub_u32 s{sRole}, s{sSplit}, s{sHead}
    s_and_b32 s{sRole}, s{sRole}, 15
    v_lshlrev_b32 v{vT3}, 11, v{vT1}
    v_and_b32 v5, 16, v{vLane}
    v_add_u32 v5, v5, v{vT3}
    s_waitcnt lgkmcnt(0)
    s_add_u32 s{sK}, s20, s{sT}
    s_addc_u32 s{sK+1}, s21, 0
    s_barrier
    s_lshl_b32 s{sT}, s{sHead}, 2
    v_mov_b32 v6, s{sT}
    s_and_b32 s{sT}, s2, 3
    s_lshl_b32 s{sT}, s{sT}, 6
    s_add_u32 s{sT}, s{sT}, {CTRL + 256}
    v_mov_b32 v85, s{sT}
    v_mov_b32 v91, {CTRL}
    v_mov_b32 v94, {CTRL + 128}
    v_lshlrev_b32 v86, 8, v{vLane}
    s_sub_u32 s55, s2, {ref0}
    s_lshl_b32 s{sT}, s55, 8
    v_mov_b32 v87, s{sT}
    v_mov_b32 v90, 0
    v_mov_b32 v7, 0
    s_mov_b32 s{sU}, 1
    s_mov_b32 s{sCur}, 0
    s_mov_b32 s{sTag}, 0
    s_mov_b32 s{sGuard}, 0x4000
    s_add_u32 s46, s20, {FBOFF}
    s_addc_u32 s47, s21, 0
    s_cmp_lg_u32 s{sRole}, 0
    s_cbranch_scc1 L_cw
    buffer_load_dword v16, v5, s[{sK}:{sK+3}], 0 offen offset:1032 sc1
    ''')
    for s in range(16):
        if s % 2 == 0: a(f's_movk_i32 s{sT}, {2048*s}')
        a(f'buffer_load_dword v{17+s}, v{vT2}, s[{sK}:{sK+3}], s{sT} offen offset:{2048*(s%2)+12} sc1')
    a(f'''
    s_mov_b32 s{sT}, 0
    s_waitcnt vmcnt(0)
    L_pick:
    s_add_u32 s{sT}, s{sT}, 1
    s_mov_b64 s[{sSm}:{sSm+1}], 0
    ''')
    for s in range(17):
        a(f'v_cmp_eq_u32 vcc, s{sT}, v{16+s}\ns_or_b64 s[{sSm}:{sSm+1}], s[{sSm}:{sSm+1}], vcc')
    a(f'''
    s_cbranch_scc1 L_pick
    v_mov_b32 v12, s{sT}
    s_mov_b64 exec, 1
    global_store_dword v6, v12, s[18:19] sc1
    s_mov_b64 exec, -1
    L_cw:
    ds_read_b32 v89, v85
    s_waitcnt lgkmcnt(0)
    v_readfirstlane_b32 s{sT}, v89
    s_cmp_lg_u32 s{sT}, 0
    s_cbranch_scc1 L_cgo
    s_sleep {hsleep}
    s_sub_u32 s{sGuard}, s{sGuard}, 1
    s_cmp_lg_u32 s{sGuard}, 0
    s_cbranch_scc1 L_cw
    s_branch L_cend
    L_cgo:
    s_mov_b32 s{sPrev}, s{sCur}
    s_mov_b32 s{sCur}, s{sT}
    v_add_u32 v85, 4, v85
    v_add_u32 v91, 4, v91
    s_cmp_eq_u32 s{sU}, 1
    s_cbranch_scc1 L_noload
    s_mov_b64 exec, {(1 << nref) - 1}
    {'' if dbg & 1 else 'global_load_dword v90, v86, s[46:47] ' + ldpol}
    L_noload:
    s_add_u32 s46, s46, {FBSTR}
    s_addc_u32 s47, s47, 0
    s_mov_b64 exec, 1
    s_cmp_ge_u32 s55, {nref}
    s_cbranch_scc1 L_nomark
    {'' if dbg & 2 else 'global_store_dword v87, v89, s[46:47] sc1'}
    L_nomark:
    s_cmp_lg_u32 s{sU}, {nat}
    s_cbranch_scc1 L_noget
    global_load_dword v7, v6, s[18:19] sc1
    L_noget:
    s_mov_b64 exec, -1
    s_waitcnt vmcnt(0)
    v_subrev_u32 v93, s{sPrev}, v90
    v_add_u32 v89, 512, v93
    v_cmp_gt_u32 vcc, 0x400, v89
    v_readfirstlane_b32 s{sTag}, v7
    s_nop 0
    v_cndmask_b32 v92, 0, v93, vcc
    ''')
    for r in (1, 2, 4, 8):
        a(f's_nop 1\nv_add_u32_dpp v92, v92, v92 row_ror:{r} row_mask:0xf bank_mask:0xf')
    a(f'''
    v_ashrrev_i32 v92, {int(math.log2(nref))}, v92
    v_add_u32 v92, s{sPrev}, v92
    s_mov_b64 exec, 1
    ds_write_b32 v91, v92
    ds_write_b32 v94, v7
    s_mov_b64 exec, -1
    s_add_u32 s{sU}, s{sU}, 1
    s_cmp_le_u32 s{sU}, {cend}
    s_cbranch_scc1 L_cw
    L_cend:
    s_mov_b32 s{sCnt}, {spin}
    L_tagspin:
    s_cmp_lg_u32 s{sTag}, 0
    s_cbranch_scc1 L_tagok
    global_load_dword v7, v6, s[18:19] sc1
    s_waitcnt vmcnt(0)
    v_readfirstlane_b32 s{sTag}, v7
    ds_write_b32 v94, v7
    s_waitcnt lgkmcnt(0)
    s_sub_u32 s{sCnt}, s{sCnt}, 1
    s_cmp_lg_u32 s{sCnt}, 0
    s_cbranch_scc1 L_tagspin
    L_tagok:
    s_and_b32 s{sT}, s{sRole}, 3
    s_cmp_lg_u32 s{sT}, 0
    s_cbranch_scc1 L_end
    s_lshl_b32 s{sT}, s{sRole}, 6
    v_lshl_add_u32 v{vT2}, v{vT1}, 4, s{sT}
    v_lshl_add_u32 v{vT2}, v{vT0}, 11, v{vT2}
    v_add_u32 v5, v{vT0}, v{vT1}
    v_and_b32 v5, 15, v5
    v_lshlrev_b32 v5, 11, v5
    s_lshr_b32 s{sT}, s{sRole}, 3
    s_lshl_b32 s{sT}, s{sT}, 4
    v_add_u32 v5, s{sT}, v5
    s_lshl_b32 s{sT}, s{sHead}, 9
    s_lshl_b32 s{sT2}, s{sRole}, 5
    s_add_u32 s{sT}, s{sT}, s{sT2}
    v_lshl_add_u32 v6, v{vT1}, 3, s{sT}
    s_mov_b32 s{sCnt}, {spin}
    s_movk_i32 s76, 0x2000
    s_movk_i32 s77, 0x4000
    s_movk_i32 s78, 0x6000
    s_mov_b32 s79, 0x0004000c
    s_mov_b32 s80, 0x04020100
    ''')
    sets = [16, 40]
    def pissue(b):
        a(f'buffer_load_dwordx3 v[{b}:{b+2}], v5, s[{sK}:{sK+3}], 0 offen offset:1024 {plpol}')
        for j in range(4):
            a(f'buffer_load_dwordx4 v[{b+4+4*j}:{b+7+4*j}], v{vT2}, s[{sK}:{sK+3}], {"0" if j == 0 else "s%d" % (75+j)} offen {plpol}')
    def pcheck(b, after):
        a(f's_waitcnt vmcnt({after + 4})')
        a(f'v_cmp_ne_u32 s[{sSm}:{sSm+1}], s{sTag}, v{b+2}\nv_mov_b32 v8, v{b}')
        for r in (1, 2, 4, 8):
            a(f's_nop 1\nv_max_f32_dpp v8, v8, v8 row_ror:{r} row_mask:0xf bank_mask:0xf')
        a(f'v_sub_f32 v8, v{b}, v8\nv_exp_f32 v8, v8\ns_nop 0\nv_mul_f32 v9, v8, v{b+1}')
        for r in (1, 2, 4, 8):
            a(f's_nop 1\nv_add_f32_dpp v9, v9, v9 row_ror:{r} row_mask:0xf bank_mask:0xf')
        a(f'v_rcp_f32 v9, v9')
        for j in range(4): a(f'v_mov_b32 v{12+j}, 0')
        a(f'v_mul_f32 v8, v8, v9\ns_waitcnt vmcnt({after})')
        for j in range(4):
            o = b + 4 + 4 * j
            a(f'v_cmp_ne_u32 vcc, s{sTag}, v{o+3}')
            a(f'v_perm_b32 v10, v{o+1}, v{o+2}, s79')
            a(f'v_perm_b32 v10, v{o}, v10, s80')
            a(f's_or_b64 s[{sSm}:{sSm+1}], s[{sSm}:{sSm+1}], vcc')
            for x in range(3):
                a(f'v_fmac_f32_dpp v{12+x}, v8, v{o+x} row_newbcast:{4*j} row_mask:0xf bank_mask:0xf')
            a(f'v_fmac_f32_dpp v15, v8, v10 row_newbcast:{4*j} row_mask:0xf bank_mask:0xf')
        for sw in (16, 32):
            for x in range(4): a(f'v_mov_b32 v{64+x}, v{12+x}')
            a('s_nop 0')
            for x in range(4): a(f'v_permlane{sw}_swap_b32 v{12+x}, v{64+x}')
            for x in range(4): a(f'v_add_f32 v{12+x}, v{12+x}, v{64+x}')
        a(f'''
        s_cmp_eq_u64 s[{sSm}:{sSm+1}], 0
        v_cvt_pk_bf16_f32 v12, v12, v13
        v_cvt_pk_bf16_f32 v13, v14, v15
        s_cbranch_scc1 L_polldone
        ''')
    pissue(sets[0]);
    if npoll == 2: pissue(sets[1])
    a('L_poll:')
    pcheck(sets[0], 5 if npoll == 2 else 0)
    if npoll == 2:
        a(f's_cmp_eq_u32 s{sCnt}, {spin}\ns_cbranch_scc1 L_first')
        pissue(sets[0])
        a('L_second:')
        pcheck(sets[1], 5)
        a(f's_cmp_lg_u32 s{sCnt}, {spin}\ns_cbranch_scc1 L_again')
        a('s_waitcnt vmcnt(0)\ns_barrier')
        if stamps: a(f's_memrealtime s[{sSt+2}:{sSt+3}]')
        pissue(sets[0])
        a('L_again:')
        pissue(sets[1])
    else:
        a(f's_cmp_lg_u32 s{sCnt}, {spin}\ns_cbranch_scc1 L_again\ns_barrier')
        if stamps: a(f's_memrealtime s[{sSt+2}:{sSt+3}]')
        a('L_again:')
        if sleep: a(f's_sleep {sleep}')
        pissue(sets[0])
    a(f'''
    s_sub_u32 s{sCnt}, s{sCnt}, 1
    s_cmp_lg_u32 s{sCnt}, 0
    s_cbranch_scc1 L_poll
    L_polldone:
    {'s_memrealtime s[66:67]' if stamps else ''}
    s_mov_b64 exec, 0xffff
    global_store_dwordx2 v6, v[12:13], s[16:17] {outpol}
    ''')
    if stamps:
        a(f's_cmp_lg_u32 s{sRole}, 0\ns_cbranch_scc1 L_hend')
        wgstamp(False)
        a('L_hend:')
    a('s_endpgm')
    if npoll == 2:
        a('L_first:\ns_waitcnt vmcnt(0)\ns_branch L_second')
    out = HEADER
    out += f'; @launch grid=(256,1,1) block=(320,1,1) lds={LDS}\n'
    out += '.amdgcn_target "amdgcn-amd-amdhsa--gfx950"\n.text\n' + a.text()
    out += '.section .rodata,"a"\n' + kd(main, NV, 88)
    return out

if __name__ == '__main__':
    kw = eval('dict(' + (sys.argv[2] if len(sys.argv) > 2 else '') + ')')
    open(sys.argv[1], 'w').write(gen(**kw))
```

```python
import sys, math
from gen import HEADER, NAME, G, kd, f32, CSCALE, MASKC

def gen(wmax=7, depth=2, base=6, gsh=4, lo=0, hi=8, cend=15, nref=4, ref0=8, cpos=2, hsleep=1, ldpol='', pol='nt',
        stamps=False, spin=1 << 20, outpol='', sleep=0, npoll=2, nat=2, baseK=None, base0=None, dbg=0, xmap=0, stpol='sc1', plpol='sc1', S=4, m=1, swap=0, b=4, rlow=0, mw=1, rot=0, rmap=(0, 4, 1, 5, 2, 6, 3, 7), open_at=128, qpos=0, ksplit=0, pf=0, pf2=0):
    lgS = int(math.log2(S))
    B = 16384 * S * m
    C, R = (4096 * m * S, 4096 * m) if swap else (4096 * m, 16384 * m)
    goff = [e * 1024 for e in range(4)]
    if b < 4:
        C = 1024 * b
        if rlow:
            R = 4096 * b
            goff = [(e // b) * 4096 * b * S + (e % b) * 1024 for e in range(4)]
        else:
            goff = [(e // b) * 4096 * b + (e % b) * 1024 for e in range(4)]
    vso = lambda e: '0' if goff[e] == 1024 * e else 's%d' % (84 + e)
    NREC = 0x80000 * S
    inc = lambda k: 4096 if k % m else B - 4096 * (m - 1)
    if mw > 1:
        R = 16384 * mw
        inc = lambda k: 16384 if k % mw else 16384 * mw * S - 16384 * (mw - 1)
    baseK = base if baseK is None else baseK
    base0 = baseK if base0 is None else base0
    a = G()
    main = NAME + '_kernel'
    vLane, vT0, vT1, vT2, vT3, vVoff, vSw, vPr, vFlag, vStamp = range(10)
    vM, vL = 10, 11
    vKo = 12
    vKr = 16
    vS = 20
    vP = 24
    vXt, vMk = 26, 27
    vQ = 28
    vA = 44
    vB = 60
    vO = 76
    vVt = 108
    vV = 112
    vCt, vLv = 176, 177
    vRec = 24
    NV = 178
    sK, sV = 24, 28
    sWave, sHead, sSplit, sKoff, sLds, sCnt, sC, sPl, sPh, sT, sT2, sTree = range(32, 44)
    sSm = 44
    sPat, sTc, sTp, sNow = 58, 59, 74, 70
    sSt = 60
    SAREA, SSTR = 65536, 4224
    CTRL = SAREA + 4 * SSTR
    LDS = CTRL + 512
    FBOFF, FBSTR = 0x100000, 4352
    top = lambda n: n + wmax
    lab = [0]

    def ckpt():
        a(f'''
        s_memrealtime s[{sNow}:{sNow+1}]
        s_mov_b32 s{sTp}, s{sTc}
        v_add_u32 v{vCt}, 4, v{vCt}
        s_waitcnt lgkmcnt(0)
        s_mov_b32 s{sTc}, s{sNow}
        v_mov_b32 v{vT0}, s{sNow}
        s_mov_b64 exec, 1
        ds_write_b32 v{vCt}, v{vT0}
        s_mov_b64 exec, -1
        ''')
        if stamps:
            a(f's_mov_b32 s49, m0\ns_mov_b32 m0, s48\ns_nop 0\nv_writelane_b32 v{vStamp}, s{sNow}, m0\ns_add_u32 s48, s48, 1\ns_mov_b32 m0, s49')
    def ctrl(k, base):
        if k % 4 != cpos: return
        a(f'''
        ds_read_b32 v{vT0}, v{vLv}
        v_add_u32 v{vLv}, 4, v{vLv}
        s_waitcnt lgkmcnt(0)
        v_readfirstlane_b32 s72, v{vT0}
        s_sub_u32 s72, s72, s{sTp}
        s_add_u32 s73, s72, 512
        s_cmp_lt_u32 s73, 1024
        s_cselect_b32 s72, s72, 0
        s_add_i32 s72, s72, {(1 << gsh) >> 1}
        s_ashr_i32 s72, s72, {gsh}
        s_add_i32 s72, s72, {base}
        s_max_i32 s72, s72, {lo}
        s_min_i32 s72, s72, {hi}
        s_bfm_b32 s{sPat}, s72, 0
        ''')

    a(f'.globl {main}\n.p2align 8\n.type {main},@function\n{main}:')
    a('s_load_dwordx16 s[4:19], s[0:1], 0')
    a('s_load_dwordx2 s[20:21], s[0:1], 64')
    a('s_cmp_ge_u32 s2, 256\ns_cbranch_scc1 L_end')
    if stamps: a(f's_memrealtime s[{sSt}:{sSt+1}]\ns_mov_b32 s48, 0\nv_mov_b32 v{vStamp}, 0')
    a(f'''
    v_lshrrev_b32 v{vT0}, 6, v0
    v_and_b32 v{vLane}, 63, v0
    v_readfirstlane_b32 s{sWave}, v{vT0}
    ''')
    if xmap:
        a(f'''
        s_and_b32 s{sHead}, s2, 7
        s_lshl_b32 s{sHead}, s{sHead}, 1
        s_bfe_u32 s{sSplit}, s2, 0x10003
        s_add_u32 s{sHead}, s{sHead}, s{sSplit}
        s_lshr_b32 s{sSplit}, s2, 4
        s_lshl_b32 s3, s{sHead}, 4
        s_add_u32 s3, s3, s{sSplit}
        ''')
    else:
        if rmap is None:
            a(f's_lshr_b32 s{sHead}, s2, 4\ns_and_b32 s{sSplit}, s2, 15\ns_mov_b32 s3, s2')
        else:
            tab = sum(v << (4 * i) for i, v in enumerate(rmap))
            a(f'''
            s_and_b32 s3, s2, 7
            s_lshl_b32 s3, s3, 2
            s_lshr_b32 s3, {tab}, s3
            s_and_b32 s3, s3, 7
            s_and_b32 s{sSplit}, s2, 0xf8
            s_or_b32 s3, s3, s{sSplit}
            s_lshr_b32 s{sHead}, s3, 4
            s_and_b32 s{sSplit}, s3, 15
            ''')
    a(f'''
    v_lshrrev_b32 v{vT0}, 4, v{vLane}            ; g
    v_and_b32 v{vT1}, 15, v{vLane}               ; i
    s_cmp_eq_u32 s{sWave}, 4
    s_cbranch_scc1 L_helper
    v_lshlrev_b32 v{vT2}, 2, v{vT0}
    v_xor_b32 v{vT2}, v{vT2}, v{vT1}
    v_lshlrev_b32 v{vT2}, 4, v{vT2}
    v_lshl_add_u32 v{vKo}, v{vT0}, 8, v{vT2}
    v_xor_b32 v{vKo+1}, 16, v{vKo}
    v_xor_b32 v{vKo+2}, 32, v{vKo}
    v_xor_b32 v{vKo+3}, 48, v{vKo}
    {chr(10).join(f'v_add_u32 v{vKo+e}, {goff[e] - 1024 * e}, v{vKo+e}' for e in range(4) if goff[e] != 1024 * e)}
    {chr(10).join(f's_mov_b32 s{84+e}, {goff[e] - 1024 * e}' for e in range(4) if goff[e] != 1024 * e)}
    v_and_b32 v{vT2}, 1, v{vLane}
    v_lshlrev_b32 v{vT3}, 4, v{vT0}
    v_lshl_add_u32 v{vPr}, v{vT2}, 8, v{vT3}
    s_mul_i32 s{sKoff}, s{sWave}, {C}
    s_and_b32 s{sT}, s3, {S-1}
    s_mul_i32 s{sT}, s{sT}, {R}
    s_add_u32 s{sKoff}, s{sKoff}, s{sT}
    {f's_lshr_b32 s{sT}, s3, {lgS}' if rot else ''}
    {f's_mul_i32 s{sT}, s{sT}, {rot * 16384 * S * mw}' if rot else ''}
    {f's_add_u32 s{sKoff}, s{sKoff}, s{sT}' if rot else ''}
    {f's_and_b32 s{sKoff}, s{sKoff}, {NREC - 1}' if rot else ''}
    s_mov_b32 s75, s{sKoff}
    s_lshl_b32 s{sLds}, s{sWave}, 14
    s_lshr_b32 s{sT}, s3, {lgS}
    s_lshl_b32 s{sT}, s{sT}, {19 + lgS}
    s_lshl_b32 s{sT2}, s{sHead}, 9
    s_mov_b32 s{sK+2}, {NREC}
    s_mov_b32 s{sK+3}, 0x20000
    s_mov_b32 m0, s{sLds}
    s_or_b32 s{sTree}, s{sWave}, s{sSplit}
    s_waitcnt lgkmcnt(0)
    s_add_u32 s{sK}, s6, s{sT}
    s_addc_u32 s{sK+1}, s7, 0
    s_add_u32 s4, s4, s{sT2}
    s_addc_u32 s5, s5, 0
    ''')
    if stamps: a('s_memrealtime s[50:51]')
    for n in range(qpos):
        a(f'buffer_load_dwordx4 v{vKo+n}, s[{sK}:{sK+3}], s{sKoff} offen offset:{1024*n} {pol} lds')
    for t in range(4):
        a(f'global_load_dwordx4 v[{vQ+4*t}:{vQ+4*t+3}], v{vPr}, s[4:5] offset:{64*t}')
    a(f'''
    s_cmp_lg_u32 s{sTree}, 0
    s_cbranch_scc1 L_notree0
    s_lshl_b32 s{sT2}, s{sHead}, 8
    s_add_u32 s10, s10, s{sT2}
    s_addc_u32 s11, s11, 0
    s_add_u32 s12, s12, s{sT2}
    s_addc_u32 s13, s13, 0
    v_mov_b32 v{vMk}, 0
    global_load_ushort v{vMk}, v{vMk}, s[14:15]
    ''')
    for t in range(4):
        a(f'global_load_dwordx4 v[{vB+4*t}:{vB+4*t+3}], v{vT3}, s[10:11] offset:{64*t}')
    a(f'''
    v_lshlrev_b32 v{vT2}, 4, v{vT1}
    global_load_dwordx4 v[{vVt}:{vVt+3}], v{vT2}, s[12:13]
    L_notree0:
    ''')
    def issue(n):
        e = n & 3
        if n < 128:
            if e == 0 and n > 0:
                a(f's_add_u32 m0, s{sLds}, {((n >> 2) % 4) * 4096}\ns_add_u32 s{sKoff}, s{sKoff}, {inc(n >> 2)}')
                if rot: a(f's_and_b32 s{sKoff}, s{sKoff}, {NREC - 1}')
            a(f'buffer_load_dwordx4 v{vKo+e}, s[{sK}:{sK+3}], s{sKoff} offen offset:{1024*e} {pol} lds')
        else:
            if e == 0 and n > 128:
                a(f'v_add_u32 v{vVoff}, {inc(n >> 2)}, v{vVoff}')
                if rot: a(f'v_and_b32 v{vVoff}, {NREC - 1}, v{vVoff}')
            if rot and n >= 144 and n % 16 == 0: a(f's_cmp_eq_u32 s{sCnt}, 1\ns_cselect_b32 s{sV+2}, 0, s{sV+2}')
            r = vV + (((n - 128) >> 2) % 4) * 16 + 4 * e
            a(f'buffer_load_dwordx4 v[{r}:{r+3}], v{vVoff}, s[{sV}:{sV+3}], {vso(e)} offen offset:{1024*e} {pol}')
    for n in range(qpos, top(-1) + 1): issue(n)
    a(f'''
    s_add_u32 s{sV}, s8, s{sT}
    s_addc_u32 s{sV+1}, s9, 0
    s_mov_b32 s{sV+2}, {NREC}
    s_mov_b32 s{sV+3}, 0x20000
    v_lshl_add_u32 v{vVoff}, v{vLane}, 4, s75
    v_mov_b32 v{vLv}, {CTRL}
    v_lshl_add_u32 v{vT2}, v{vLane}, 3, v{vLv}
    v_mov_b32 v{vS}, 0
    v_mov_b32 v{vS+1}, 0
    ds_write_b64 v{vT2}, v[{vS}:{vS+1}]
    s_lshl_b32 s{sT}, s{sWave}, 6
    s_add_u32 s{sT}, s{sT}, {CTRL + 256 - 4}
    v_mov_b32 v{vCt}, s{sT}
    s_mov_b32 s{sPat}, {(1 << base0) - 1}
    s_mov_b32 s{sTc}, 0
    s_mov_b32 s{sTp}, 0
    v_and_b32 v{vT2}, 3, v{vT1}
    v_lshlrev_b32 v{vT2}, 10, v{vT2}
    v_lshrrev_b32 v{vT3}, 2, v{vT1}
    v_lshl_add_u32 v{vT2}, v{vT3}, 8, v{vT2}
    v_xor_b32 v{vT3}, v{vT0}, v{vT1}
    v_lshl_add_u32 v{vT2}, v{vT3}, 4, v{vT2}
    v_add_u32 v{vKr}, s{sLds}, v{vT2}
    v_xor_b32 v{vKr+1}, 64, v{vKr}
    v_xor_b32 v{vKr+2}, 0x80, v{vKr}
    v_xor_b32 v{vKr+3}, 0xc0, v{vKr}
    v_and_b32 v{vT2}, 1, v{vLane}
    v_lshl_add_u32 v{vT2}, v{vT0}, 1, v{vT2}
    s_mul_i32 s{sT}, s{sWave}, {SSTR}
    s_add_u32 s{sT}, s{sT}, {SAREA}
    v_lshl_add_u32 v{vSw}, v{vT2}, 4, s{sT}
    s_add_u32 s{sT}, s{sT}, 128
    v_lshl_add_u32 v{vPr}, v{vT2}, 3, s{sT}
    s_mov_b32 s{sC}, {f32(CSCALE)}
    s_mov_b32 s{sPl}, 0x05040100
    s_mov_b32 s{sPh}, 0x07060302
    s_mov_b32 s{sSm}, 0x00030003
    s_mov_b32 s{sSm+1}, 0x00030003
    s_mov_b32 s{sCnt}, 7
    s_waitcnt lgkmcnt(0)
    s_barrier
    ''')
    if stamps:
        a(f's_memrealtime s[52:53]\ns_waitcnt vmcnt({top(-1)})\ns_memrealtime s[54:55]\ns_waitcnt vmcnt({top(-1)-3})\ns_memrealtime s[56:57]')
    def steps(n0, work):
        for n in range(n0, n0 + 4):
            a(f's_waitcnt vmcnt({wmax - 1})')
            lab[0] += 1
            for dd in range(0 if open_at <= n < 128 else depth):
                a(f's_bitcmp1_b32 s{sPat}, {4 * dd + n % 4}\ns_cbranch_scc0 L_w{lab[0]}\ns_waitcnt vmcnt({wmax - 2 - dd})')
            a(f'L_w{lab[0]}:')
            issue(n + wmax)
            work(n - n0)
    def kunit(k):
        def qk():
            for t in range(4):
                a(f's_waitcnt lgkmcnt({3 - t})' if not ksplit else ('s_waitcnt lgkmcnt(0)' if t == 0 else ''))
                c = '0' if t == 0 else f'v[{vS}:{vS+3}]'
                a(f'v_mfma_f32_16x16x32_bf16 v[{vS}:{vS+3}], v[{vA+4*t}:{vA+4*t+3}], v[{vQ+4*t}:{vQ+4*t+3}], {c}')
        kunit.qk = qk
        def work(e):
            if ksplit and e == 0: qk()
            if e != 3: return
            a(f's_mov_b64 exec, s[{sSm}:{sSm+1}]\nds_write_b128 v{vSw}, v[{vS}:{vS+3}] offset:{(k % 4) * 128}\ns_mov_b64 exec, -1')
            for t in range(4):
                a(f'ds_read_b128 v[{vA+4*t}:{vA+4*t+3}], v{vKr+t} offset:{(k % 4) * 4096}')
            if not ksplit: qk()
        steps(4 * k, work)
        ctrl(k, baseK)
    a('L_kloop:')
    for k in range(4, 8): kunit(k)
    ckpt()
    a(f'''
    v_add_u32 v{vSw}, 0x200, v{vSw}
    s_sub_u32 s{sCnt}, s{sCnt}, 1
    s_cmp_lg_u32 s{sCnt}, 0
    s_cbranch_scc1 L_kloop
    ''')
    for k in range(28, 32): kunit(k)
    if ksplit: kunit.qk()
    ckpt()
    a(f'''
    v_mov_b32 v{vXt}, 0xff800000
    s_mul_i32 s{sT}, s{sWave}, {SSTR}
    s_add_u32 s{sT}, s{sT}, {SAREA + 128}
    v_lshl_add_u32 v{vT2}, v{vLane}, 4, s{sT}
    v_lshl_add_u32 v{vT3}, v{vLane}, 3, s{sT}
    s_mov_b64 exec, s[{sSm}:{sSm+1}]
    ds_write_b128 v{vSw}, v[{vS}:{vS+3}] offset:512
    s_mov_b64 exec, -1
    ''')
    for j in range(4):
        a(f'ds_read_b128 v[{vA+4*j}:{vA+4*j+3}], v{vT2} offset:{1024*j}')
    a(f's_cmp_lg_u32 s{sTree}, 0\ns_cbranch_scc1 L_notree1')
    for t in range(4):
        c = '0' if t == 0 else f'v[{vS}:{vS+3}]'
        a(f'v_mfma_f32_16x16x32_bf16 v[{vS}:{vS+3}], v[{vB+4*t}:{vB+4*t+3}], v[{vQ+4*t}:{vQ+4*t+3}], {c}')
    a(f'''
    v_lshlrev_b32 v{vMk}, 16, v{vMk}
    v_sub_f32 v{vMk}, 1.0, v{vMk}
    v_mul_f32 v{vMk}, {f32(MASKC)}, v{vMk}
    s_nop 4
    v_fma_f32 v{vXt}, v{vS}, s{sC}, v{vMk}
    L_notree1:
    s_waitcnt lgkmcnt(0)
    v_max3_f32 v{vM}, v{vA}, v{vA+1}, v{vA+2}
    v_max3_f32 v{vT0}, v{vA+3}, v{vA+4}, v{vA+5}
    v_max3_f32 v{vM}, v{vM}, v{vA+6}, v{vA+7}
    v_max3_f32 v{vT0}, v{vT0}, v{vA+8}, v{vA+9}
    v_max3_f32 v{vM}, v{vM}, v{vA+10}, v{vA+11}
    v_max3_f32 v{vT0}, v{vT0}, v{vA+12}, v{vA+13}
    v_max3_f32 v{vM}, v{vM}, v{vA+14}, v{vA+15}
    v_max_f32 v{vM}, v{vM}, v{vT0}
    v_mul_f32 v{vM}, s{sC}, v{vM}
    v_max_f32 v{vM}, v{vM}, v{vXt}
    ''')
    def allreduce(op, v):
        for r in (2, 4, 8):
            a(f's_nop 1\n{op}_dpp v{v}, v{v}, v{v} row_ror:{r} row_mask:0xf bank_mask:0xf')
        for sw in (16, 32):
            a(f'v_mov_b32 v{vT0}, v{v}\ns_nop 1\nv_permlane{sw}_swap_b32 v{v}, v{vT0}\n{op} v{v}, v{v}, v{vT0}')
    allreduce('v_max_f32', vM)
    for i in range(16): a(f'v_fma_f32 v{vA+i}, v{vA+i}, s{sC}, -v{vM}')
    a(f'v_sub_f32 v{vXt}, v{vXt}, v{vM}')
    for i in range(16): a(f'v_exp_f32 v{vA+i}, v{vA+i}')
    a(f'v_exp_f32 v{vXt}, v{vXt}')
    for j in range(4):
        a(f'v_cvt_pk_bf16_f32 v{vB+2*j}, v{vA+4*j}, v{vA+4*j+1}')
        a(f'v_cvt_pk_bf16_f32 v{vB+2*j+1}, v{vA+4*j+2}, v{vA+4*j+3}')
        a(f'ds_write_b64 v{vT3}, v[{vB+2*j}:{vB+2*j+1}] offset:{512*j}')
    for st in (1, 2, 4, 8):
        for i in range(0, 16, 2 * st): a(f'v_add_f32 v{vA+i}, v{vA+i}, v{vA+i+st}')
    a(f'v_mov_b32 v{vL}, v{vA}')
    allreduce('v_add_f32', vL)
    a(f'v_add_f32 v{vL}, v{vL}, v{vXt}')
    for i in range(32): a(f'v_mov_b32 v{vO+i}, 0')
    a(f'''
    s_cmp_lg_u32 s{sTree}, 0
    s_cbranch_scc1 L_notree2
    v_readlane_b32 s{sT}, v{vXt}, 0
    v_readlane_b32 s{sT2}, v{vXt}, 1
    ''')
    for u in range(8):
        src = vVt + u // 2
        if u % 2 == 0: a(f'v_lshlrev_b32 v{vT0}, 16, v{src}')
        else: a(f'v_and_b32 v{vT0}, 0xffff0000, v{src}')
        a(f'v_mul_f32 v{vO+4*u}, s{sT}, v{vT0}\nv_mul_f32 v{vO+4*u+1}, s{sT2}, v{vT0}')
    a(f'''
    L_notree2:
    s_waitcnt lgkmcnt(0)
    s_mov_b32 s{sCnt}, 8
    L_vloop:
    ''')
    def vunit(k):
        def work(e):
            if e == 0: a(f'ds_read_b64 v[{vP}:{vP+1}], v{vPr} offset:{(k % 4) * 64}')
            if e % 2 == 1:
                p = e // 2
                for u in range(8):
                    rl = vV + (k % 4) * 16 + 8 * p + u // 2
                    a(f'v_perm_b32 v{vB+2*u+p}, v{rl+4}, v{rl}, s{sPl if u % 2 == 0 else sPh}')
            if e == 3:
                a('s_waitcnt lgkmcnt(0)')
                for u in range(8):
                    a(f'v_mfma_f32_16x16x16_bf16 v[{vO+4*u}:{vO+4*u+3}], v[{vP}:{vP+1}], v[{vB+2*u}:{vB+2*u+1}], v[{vO+4*u}:{vO+4*u+3}]')
        steps(128 + 4 * k, work)
        ctrl(k, base)
    for k in range(4, 8): vunit(k)
    ckpt()
    a(f'''
    v_add_u32 v{vPr}, 0x100, v{vPr}
    s_sub_u32 s{sCnt}, s{sCnt}, 1
    s_cmp_lg_u32 s{sCnt}, 0
    s_cbranch_scc1 L_vloop
    ''')
    if stamps: a(f's_memrealtime s[{sSt+2}:{sSt+3}]')
    a(f'''
    v_lshl_add_u32 v{vT0}, v{vLane}, 5, s{sLds}
    v_lshl_add_u32 v{vT1}, v{vLane}, 3, s{sLds}
    v_lshlrev_b32 v{vT2}, 4, v{vLane}
    v_lshrrev_b32 v{vT3}, 5, v{vLane}
    v_lshlrev_b32 v{vT3}, 3, v{vT3}
    v_mov_b32 v{vLv}, {CTRL + 128}
    s_mov_b64 exec, 3
    ds_write_b64 v{vT1}, v[{vM}:{vL}] offset:1024
    s_mov_b64 exec, 0xffff
    ''')
    for u in range(0, 8, 2):
        for r in range(2):
            a(f'ds_write2_b32 v{vT0}, v{vO+4*u+r}, v{vO+4*u+4+r} offset0:{128*r+u} offset1:{128*r+u+1}')
    a(f'''
    s_mov_b64 exec, -1
    s_waitcnt lgkmcnt(0)
    s_barrier
    ''')
    def tsdump():
        a(f'''
        s_mov_b64 exec, -1
        v_writelane_b32 v{vStamp}, s50, 59
        v_writelane_b32 v{vStamp}, s52, 58
        v_writelane_b32 v{vStamp}, s54, 57
        v_writelane_b32 v{vStamp}, s56, 56
        v_writelane_b32 v{vStamp}, s{sSt}, 63
        v_writelane_b32 v{vStamp}, s48, 62
        s_mov_b32 s49, 16384
        v_writelane_b32 v{vStamp}, s49, 61
        s_lshl_b32 s49, s3, 2
        s_add_u32 s49, s49, s{sWave}
        s_lshl_b32 s49, s49, 8
        v_lshl_add_u32 v{vLv}, v{vLane}, 2, s49
        s_add_u32 s46, s20, 0x10100000
        s_addc_u32 s47, s21, 0
        global_store_dword v{vLv}, v{vStamp}, s[46:47]
        ''')
    a(f's_cmp_lg_u32 s{sWave}, 0\ns_cbranch_scc1 {"L_tsonly" if stamps else "L_end"}')
    a(f'ds_read_b32 v{vRec+2}, v{vLv}')
    for x in range(4):
        a(f'ds_read_b64 v[{vQ+2*x}:{vQ+2*x+1}], v{vT3} offset:{16384*x+1024}')
    for x in range(4):
        a(f'ds_read_b128 v[{vA+4*x}:{vA+4*x+3}], v{vT2} offset:{16384*x}')
    a(f'''
    s_lshl_b32 s{sT}, s3, 11
    s_add_u32 s22, s20, s{sT}
    s_addc_u32 s23, s21, 0
    v_lshlrev_b32 v{vT3}, 1, v{vT3}
    s_mov_b32 s76, 0x07060503
    s_mov_b32 s77, 0x07060502
    s_mov_b32 s78, 0x07060501
    s_waitcnt lgkmcnt(4)
    v_readfirstlane_b32 s{sT2}, v{vRec+2}
    v_max3_f32 v{vM}, v{vQ}, v{vQ+2}, v{vQ+4}
    v_max_f32 v{vM}, v{vM}, v{vQ+6}
    ''')
    for x in range(4): a(f'v_sub_f32 v{vQ+2*x}, v{vQ+2*x}, v{vM}')
    for x in range(4): a(f'v_exp_f32 v{vQ+2*x}, v{vQ+2*x}')
    a(f'''
    s_cmp_eq_u32 s{sT2}, 0
    s_cbranch_scc1 L_flagwait
    L_flagok:
    v_mul_f32 v{vL}, v{vQ}, v{vQ+1}
    s_waitcnt lgkmcnt(0)
    ''')
    for j in range(4): a(f'v_mul_f32 v{vS+j}, v{vQ}, v{vA+j}')
    for x in range(1, 4):
        a(f'v_fma_f32 v{vL}, v{vQ+2*x}, v{vQ+2*x+1}, v{vL}')
        for j in range(4): a(f'v_fma_f32 v{vS+j}, v{vQ+2*x}, v{vA+4*x+j}, v{vS+j}')
    a(f'''
    v_perm_b32 v{vS}, v{vS}, v{vS+3}, s76
    v_perm_b32 v{vS+1}, v{vS+1}, v{vS+3}, s77
    v_perm_b32 v{vS+2}, v{vS+2}, v{vS+3}, s78
    v_mov_b32 v{vS+3}, v{vRec+2}
    v_mov_b32 v{vRec}, v{vM}
    v_mov_b32 v{vRec+1}, v{vL}
    {'s_memrealtime s[66:67]' if stamps else ''}
    global_store_dwordx4 v{vT2}, v[{vS}:{vS+3}], s[22:23] {stpol}
    s_mov_b32 exec_lo, 1
    s_mov_b32 exec_hi, 1
    global_store_dwordx3 v{vT3}, v[{vRec}:{vRec+2}], s[22:23] offset:1024 {stpol}
    ''')
    def wgstamp(worker):
        a(f'''
        s_waitcnt vmcnt(0)
        s_memrealtime s[{sSt+4}:{sSt+5}]
        s_waitcnt lgkmcnt(0)
        s_add_u32 s46, s20, 0x10000000
        s_addc_u32 s47, s21, 0
        s_lshl_b32 s49, s3, 5
        s_mov_b64 exec, 1
        v_mov_b32 v1, s49
        s_add_u32 s68, s20, 0x10200000
        s_addc_u32 s69, s21, 0
        v_mov_b32 v12, s66
        v_mov_b32 v13, s{sSt+4}
        v_mov_b32 v14, s{sSt+2}
        v_mov_b32 v15, s{sCnt}
        global_store_dwordx4 v1, v[12:15], s[68:69] offset:{0 if worker else 16}
        ''')
        if worker:
            a(f'''
            v_mov_b32 v4, s{sSt}
            v_mov_b32 v5, s{sSt+1}
            v_mov_b32 v6, s{sSt+2}
            v_mov_b32 v7, s{sSt+3}
            s_getreg_b32 s44, hwreg(HW_REG_XCC_ID)
            v_mov_b32 v10, s44
            v_mov_b32 v11, 0
            global_store_dwordx4 v1, v[4:7], s[46:47]
            global_store_dwordx2 v1, v[10:11], s[46:47] offset:24
            s_sub_u32 s49, s{sSplit}, s{sHead}
            s_and_b32 s49, s49, 15
            s_cmp_eq_u32 s49, 0
            s_cbranch_scc1 L_tsonly
            ''')
        a(f'''
        v_mov_b32 v16, s{sSt+4}
        v_mov_b32 v17, s{sSt+5}
        global_store_dwordx2 v1, v[16:17], s[46:47] offset:16
        ''')
    if stamps:
        wgstamp(True)
        a('L_tsonly:')
        tsdump()
    a('L_end:\ns_endpgm')
    a(f'''
    L_flagwait:
    s_mov_b32 s{sCnt}, {spin}
    L_flagspin:
    s_sleep 1
    ds_read_b32 v{vRec+2}, v{vLv}
    s_waitcnt lgkmcnt(0)
    v_readfirstlane_b32 s{sT2}, v{vRec+2}
    s_sub_u32 s{sCnt}, s{sCnt}, 1
    s_cmp_eq_u32 s{sCnt}, 0
    s_cbranch_scc1 L_flagok
    s_cmp_eq_u32 s{sT2}, 0
    s_cbranch_scc1 L_flagspin
    s_branch L_flagok
    ''')
    sU, sCur, sPrev, sTag, sGuard, sRole = 50, 51, 52, 53, 54, 56
    a(f'''
    L_helper:
    ''')
    if pf:
        a(f'''
        s_getpc_b64 s[88:89]
        L_pf0:
        v_lshlrev_b32 v95, 7, v{vLane}
        s_sub_u32 s88, s88, L_pf0-{main}
        s_subb_u32 s89, s89, 0
        v_min_u32 v95, L_codeend-{main}, v95
        global_load_dword v96, v95, s[88:89]
        ''')
    a(f'''
    v_lshlrev_b32 v{vT2}, 4, v{vLane}
    s_lshl_b32 s{sT}, s{sHead}, 15
    s_mov_b32 s{sK+2}, 0x8000
    s_mov_b32 s{sK+3}, 0x20000
    s_sub_u32 s{sRole}, s{sSplit}, s{sHead}
    s_and_b32 s{sRole}, s{sRole}, 15
    v_lshlrev_b32 v{vT3}, 11, v{vT1}
    v_and_b32 v5, 16, v{vLane}
    v_add_u32 v5, v5, v{vT3}
    s_waitcnt lgkmcnt(0)
    s_add_u32 s{sK}, s20, s{sT}
    s_addc_u32 s{sK+1}, s21, 0
    s_barrier
    s_lshl_b32 s{sT}, s{sHead}, 2
    v_mov_b32 v6, s{sT}
    s_and_b32 s{sT}, s2, 3
    s_lshl_b32 s{sT}, s{sT}, 6
    s_add_u32 s{sT}, s{sT}, {CTRL + 256}
    v_mov_b32 v85, s{sT}
    v_mov_b32 v91, {CTRL}
    v_mov_b32 v94, {CTRL + 128}
    v_lshlrev_b32 v86, 8, v{vLane}
    s_sub_u32 s55, s2, {ref0}
    s_lshl_b32 s{sT}, s55, 8
    v_mov_b32 v87, s{sT}
    v_mov_b32 v90, 0
    v_mov_b32 v7, 0
    s_mov_b32 s{sU}, 1
    s_mov_b32 s{sCur}, 0
    s_mov_b32 s{sTag}, 0
    s_mov_b32 s{sGuard}, 0x4000
    s_add_u32 s46, s20, {FBOFF}
    s_addc_u32 s47, s21, 0
    s_cmp_lg_u32 s{sRole}, 0
    s_cbranch_scc1 L_cw
    buffer_load_dword v16, v5, s[{sK}:{sK+3}], 0 offen offset:1032 sc1
    ''')
    for s in range(16):
        if s % 2 == 0: a(f's_movk_i32 s{sT}, {2048*s}')
        a(f'buffer_load_dword v{17+s}, v{vT2}, s[{sK}:{sK+3}], s{sT} offen offset:{2048*(s%2)+12} sc1')
    a(f'''
    s_mov_b32 s{sT}, 0
    s_waitcnt vmcnt(0)
    L_pick:
    s_add_u32 s{sT}, s{sT}, 1
    s_mov_b64 s[{sSm}:{sSm+1}], 0
    ''')
    for s in range(17):
        a(f'v_cmp_eq_u32 vcc, s{sT}, v{16+s}\ns_or_b64 s[{sSm}:{sSm+1}], s[{sSm}:{sSm+1}], vcc')
    a(f'''
    s_cbranch_scc1 L_pick
    v_mov_b32 v12, s{sT}
    s_mov_b64 exec, 1
    global_store_dword v6, v12, s[18:19] sc1
    s_mov_b64 exec, -1
    L_cw:
    ds_read_b32 v89, v85
    s_waitcnt lgkmcnt(0)
    v_readfirstlane_b32 s{sT}, v89
    s_cmp_lg_u32 s{sT}, 0
    s_cbranch_scc1 L_cgo
    s_sleep {hsleep}
    s_sub_u32 s{sGuard}, s{sGuard}, 1
    s_cmp_lg_u32 s{sGuard}, 0
    s_cbranch_scc1 L_cw
    s_branch L_cend
    L_cgo:
    s_mov_b32 s{sPrev}, s{sCur}
    s_mov_b32 s{sCur}, s{sT}
    v_add_u32 v85, 4, v85
    v_add_u32 v91, 4, v91
    s_cmp_eq_u32 s{sU}, 1
    s_cbranch_scc1 L_noload
    s_mov_b64 exec, {(1 << nref) - 1}
    {'' if dbg & 1 else 'global_load_dword v90, v86, s[46:47] ' + ldpol}
    L_noload:
    s_add_u32 s46, s46, {FBSTR}
    s_addc_u32 s47, s47, 0
    s_mov_b64 exec, 1
    s_cmp_ge_u32 s55, {nref}
    s_cbranch_scc1 L_nomark
    {'' if dbg & 2 else 'global_store_dword v87, v89, s[46:47] sc1'}
    L_nomark:
    s_cmp_lg_u32 s{sU}, {nat}
    s_cbranch_scc1 L_noget
    global_load_dword v7, v6, s[18:19] sc1
    L_noget:
    s_mov_b64 exec, -1
    {f's_cmp_lg_u32 s{sU}, {pf2}' if pf2 else ''}
    {'s_cbranch_scc1 L_nopf' if pf2 else ''}
    {'global_load_dword v96, v95, s[88:89]' if pf2 else ''}
    {'L_nopf:' if pf2 else ''}
    s_waitcnt vmcnt(0)
    v_subrev_u32 v93, s{sPrev}, v90
    v_add_u32 v89, 512, v93
    v_cmp_gt_u32 vcc, 0x400, v89
    v_readfirstlane_b32 s{sTag}, v7
    s_nop 0
    v_cndmask_b32 v92, 0, v93, vcc
    ''')
    for r in (1, 2, 4, 8):
        a(f's_nop 1\nv_add_u32_dpp v92, v92, v92 row_ror:{r} row_mask:0xf bank_mask:0xf')
    a(f'''
    v_ashrrev_i32 v92, {int(math.log2(nref))}, v92
    v_add_u32 v92, s{sPrev}, v92
    s_mov_b64 exec, 1
    ds_write_b32 v91, v92
    ds_write_b32 v94, v7
    s_mov_b64 exec, -1
    s_add_u32 s{sU}, s{sU}, 1
    s_cmp_le_u32 s{sU}, {cend}
    s_cbranch_scc1 L_cw
    L_cend:
    s_mov_b32 s{sCnt}, {spin}
    L_tagspin:
    s_cmp_lg_u32 s{sTag}, 0
    s_cbranch_scc1 L_tagok
    global_load_dword v7, v6, s[18:19] sc1
    s_waitcnt vmcnt(0)
    v_readfirstlane_b32 s{sTag}, v7
    ds_write_b32 v94, v7
    s_waitcnt lgkmcnt(0)
    s_sub_u32 s{sCnt}, s{sCnt}, 1
    s_cmp_lg_u32 s{sCnt}, 0
    s_cbranch_scc1 L_tagspin
    L_tagok:
    s_and_b32 s{sT}, s{sRole}, 3
    s_cmp_lg_u32 s{sT}, 0
    s_cbranch_scc1 L_end
    s_lshl_b32 s{sT}, s{sRole}, 6
    v_lshl_add_u32 v{vT2}, v{vT1}, 4, s{sT}
    v_lshl_add_u32 v{vT2}, v{vT0}, 11, v{vT2}
    v_add_u32 v5, v{vT0}, v{vT1}
    v_and_b32 v5, 15, v5
    v_lshlrev_b32 v5, 11, v5
    s_lshr_b32 s{sT}, s{sRole}, 3
    s_lshl_b32 s{sT}, s{sT}, 4
    v_add_u32 v5, s{sT}, v5
    s_lshl_b32 s{sT}, s{sHead}, 9
    s_lshl_b32 s{sT2}, s{sRole}, 5
    s_add_u32 s{sT}, s{sT}, s{sT2}
    v_lshl_add_u32 v6, v{vT1}, 3, s{sT}
    s_mov_b32 s{sCnt}, {spin}
    s_movk_i32 s76, 0x2000
    s_movk_i32 s77, 0x4000
    s_movk_i32 s78, 0x6000
    s_mov_b32 s79, 0x0004000c
    s_mov_b32 s80, 0x04020100
    ''')
    sets = [16, 40]
    def pissue(b):
        a(f'buffer_load_dwordx3 v[{b}:{b+2}], v5, s[{sK}:{sK+3}], 0 offen offset:1024 {plpol}')
        for j in range(4):
            a(f'buffer_load_dwordx4 v[{b+4+4*j}:{b+7+4*j}], v{vT2}, s[{sK}:{sK+3}], {"0" if j == 0 else "s%d" % (75+j)} offen {plpol}')
    def pcheck(b, after):
        a(f's_waitcnt vmcnt({after + 4})')
        a(f'v_cmp_ne_u32 s[{sSm}:{sSm+1}], s{sTag}, v{b+2}\nv_mov_b32 v8, v{b}')
        for r in (1, 2, 4, 8):
            a(f's_nop 1\nv_max_f32_dpp v8, v8, v8 row_ror:{r} row_mask:0xf bank_mask:0xf')
        a(f'v_sub_f32 v8, v{b}, v8\nv_exp_f32 v8, v8\ns_nop 0\nv_mul_f32 v9, v8, v{b+1}')
        for r in (1, 2, 4, 8):
            a(f's_nop 1\nv_add_f32_dpp v9, v9, v9 row_ror:{r} row_mask:0xf bank_mask:0xf')
        a(f'v_rcp_f32 v9, v9')
        for j in range(4): a(f'v_mov_b32 v{12+j}, 0')
        a(f'v_mul_f32 v8, v8, v9\ns_waitcnt vmcnt({after})')
        for j in range(4):
            o = b + 4 + 4 * j
            a(f'v_cmp_ne_u32 vcc, s{sTag}, v{o+3}')
            a(f'v_perm_b32 v10, v{o+1}, v{o+2}, s79')
            a(f'v_perm_b32 v10, v{o}, v10, s80')
            a(f's_or_b64 s[{sSm}:{sSm+1}], s[{sSm}:{sSm+1}], vcc')
            for x in range(3):
                a(f'v_fmac_f32_dpp v{12+x}, v8, v{o+x} row_newbcast:{4*j} row_mask:0xf bank_mask:0xf')
            a(f'v_fmac_f32_dpp v15, v8, v10 row_newbcast:{4*j} row_mask:0xf bank_mask:0xf')
        for sw in (16, 32):
            for x in range(4): a(f'v_mov_b32 v{64+x}, v{12+x}')
            a('s_nop 0')
            for x in range(4): a(f'v_permlane{sw}_swap_b32 v{12+x}, v{64+x}')
            for x in range(4): a(f'v_add_f32 v{12+x}, v{12+x}, v{64+x}')
        a(f'''
        s_cmp_eq_u64 s[{sSm}:{sSm+1}], 0
        v_cvt_pk_bf16_f32 v12, v12, v13
        v_cvt_pk_bf16_f32 v13, v14, v15
        s_cbranch_scc1 L_polldone
        ''')
    pissue(sets[0]);
    if npoll == 2: pissue(sets[1])
    a('L_poll:')
    pcheck(sets[0], 5 if npoll == 2 else 0)
    if npoll == 2:
        a(f's_cmp_eq_u32 s{sCnt}, {spin}\ns_cbranch_scc1 L_first')
        pissue(sets[0])
        a('L_second:')
        pcheck(sets[1], 5)
        a(f's_cmp_lg_u32 s{sCnt}, {spin}\ns_cbranch_scc1 L_again')
        a('s_waitcnt vmcnt(0)\ns_barrier')
        if stamps: a(f's_memrealtime s[{sSt+2}:{sSt+3}]')
        pissue(sets[0])
        a('L_again:')
        pissue(sets[1])
    else:
        a(f's_cmp_lg_u32 s{sCnt}, {spin}\ns_cbranch_scc1 L_again\ns_barrier')
        if stamps: a(f's_memrealtime s[{sSt+2}:{sSt+3}]')
        a('L_again:')
        if sleep: a(f's_sleep {sleep}')
        pissue(sets[0])
    a(f'''
    s_sub_u32 s{sCnt}, s{sCnt}, 1
    s_cmp_lg_u32 s{sCnt}, 0
    s_cbranch_scc1 L_poll
    L_polldone:
    {'s_memrealtime s[66:67]' if stamps else ''}
    s_mov_b64 exec, 0xffff
    global_store_dwordx2 v6, v[12:13], s[16:17] {outpol}
    ''')
    if stamps:
        a(f's_cmp_lg_u32 s{sRole}, 0\ns_cbranch_scc1 L_hend')
        wgstamp(False)
        a('L_hend:')
    a('s_endpgm')
    if npoll == 2:
        a('L_first:\ns_waitcnt vmcnt(0)\nL_codeend:\ns_branch L_second')
    out = HEADER
    out += f'; @launch grid=(256,1,1) block=(320,1,1) lds={LDS}\n'
    out += '.amdgcn_target "amdgcn-amd-amdhsa--gfx950"\n.text\n' + a.text()
    out += '.section .rodata,"a"\n' + kd(main, NV, 90)
    return out

if __name__ == '__main__':
    kw = eval('dict(' + (sys.argv[2] if len(sys.argv) > 2 else '') + ')')
    open(sys.argv[1], 'w').write(gen(**kw))
```

```python
import sys, math
from gen import HEADER, NAME, G, kd, f32, CSCALE, MASKC

DOC = """;
"""

def gen(wmax=7, depth=2, base=6, gsh=4, lo=0, hi=8, cend=14, nref=8, ref0=8, cpos=2, nat=2, stamps=False, spin=1 << 20, exp=0, weave=1, perm=0):
    a = G()
    main = NAME + '_kernel'
    pol = 'nt'
    vLane, vT0, vT1, vT2, vT3, vVoff, vSw, vPr, vCt, vStamp = range(10)
    vM, vL = 10, 11
    vKo = 12
    vKr = 16
    vS = 20
    vP = 24
    vRec = 24
    vXt, vMk = 26, 27
    vQ = 28
    vA = 44
    vB = 60
    vO = 76
    vVt = 108
    vV = 112
    vLv = 176
    NV = 177
    sK, sV = 24, 28
    sWave, sHead, sSplit, sKoff, sLds, sCnt, sC, sPl, sPh, sT, sT2, sTree = range(32, 44)
    sSm = 44
    sPat, sTc, sTp, sNow, sX, sY, sV0 = 58, 59, 74, 70, 72, 73, 75
    sSt = 60
    SAREA, SSTR = 65536, 4224
    CTRL = SAREA + 4 * SSTR
    LDS = CTRL + 512
    FBOFF, FBSTR = 0x100000, 4352
    STEP, NREC = 65536, 0x200000
    lab = [0]

    def ckpt():
        a(f'''
        s_memrealtime s[{sNow}:{sNow+1}]
        s_mov_b32 s{sTp}, s{sTc}
        v_add_u32 v{vCt}, 4, v{vCt}
        s_waitcnt lgkmcnt(0)
        s_or_b32 s{sTc}, s{sNow}, 1
        v_mov_b32 v{vT0}, s{sTc}
        s_mov_b64 exec, 1
        ds_write_b32 v{vCt}, v{vT0}
        s_mov_b64 exec, -1
        ''')
        if stamps:
            a(f's_mov_b32 s49, m0\ns_mov_b32 m0, s48\ns_nop 0\nv_writelane_b32 v{vStamp}, s{sNow}, m0\ns_add_u32 s48, s48, 1\ns_mov_b32 m0, s49')
    def ctrl(k):
        if k % 4 != cpos: return
        a(f'''
        ds_read_b32 v{vT0}, v{vLv}
        v_add_u32 v{vLv}, 4, v{vLv}
        s_waitcnt lgkmcnt(0)
        v_readfirstlane_b32 s{sX}, v{vT0}
        s_sub_u32 s{sX}, s{sX}, s{sTp}
        s_add_u32 s{sY}, s{sX}, 512
        s_cmp_lt_u32 s{sY}, 1024
        s_cselect_b32 s{sX}, s{sX}, 0
        s_add_i32 s{sX}, s{sX}, {(1 << gsh) >> 1}
        s_ashr_i32 s{sX}, s{sX}, {gsh}
        s_add_i32 s{sX}, s{sX}, {base}
        s_max_i32 s{sX}, s{sX}, {lo}
        s_min_i32 s{sX}, s{sX}, {hi}
        s_bfm_b32 s{sPat}, s{sX}, 0
        ''')
    def issue(n):
        e = n & 3
        if n < 128:
            if e == 0 and n > 0:
                a(f's_add_u32 m0, s{sLds}, {((n >> 2) % 4) * 4096}\ns_add_u32 s{sKoff}, s{sKoff}, {STEP}')
            a(f'buffer_load_dwordx4 v{vKo+e}, s[{sK}:{sK+3}], s{sKoff} offen offset:{1024*e} {pol} lds')
        else:
            if e == 0 and n > 128:
                a(f'v_add_u32 v{vVoff}, {STEP}, v{vVoff}')
            r = vV + (((n - 128) >> 2) % 4) * 16 + 4 * e
            a(f'buffer_load_dwordx4 v[{r}:{r+3}], v{vVoff}, s[{sV}:{sV+3}], 0 offen offset:{1024*e} {pol}')

    a(f'.globl {main}\n.p2align 8\n.type {main},@function\n{main}:')
    a('s_load_dwordx16 s[4:19], s[0:1], 0')
    a('s_cmp_ge_u32 s2, 256\ns_cbranch_scc1 L_end')
    if perm: a(f's_mul_i32 s2, s2, {perm}\ns_add_u32 s2, s2, 77\ns_and_b32 s2, s2, 255')
    if stamps: a(f's_memrealtime s[{sSt}:{sSt+1}]\ns_mov_b32 s48, 0\nv_mov_b32 v{vStamp}, 0')
    a(f'''
    v_lshrrev_b32 v{vT0}, 6, v0
    v_and_b32 v{vLane}, 63, v0
    s_lshr_b32 s3, s2, 3
    v_readfirstlane_b32 s{sWave}, v{vT0}
    s_and_b32 s{sT}, s2, 1
    s_lshl1_add_u32 s3, s3, s{sT}
    s_bfe_u32 s{sSplit}, s2, 0x20001
    v_lshrrev_b32 v{vT0}, 4, v{vLane}            ; g = lane>>4
    v_and_b32 v{vT1}, 15, v{vLane}               ; i = lane&15
    s_cmp_eq_u32 s{sWave}, 4
    s_cbranch_scc1 L_helper
    v_lshlrev_b32 v{vT2}, 2, v{vT0}
    v_xor_b32 v{vT2}, v{vT2}, v{vT1}
    v_lshlrev_b32 v{vT2}, 4, v{vT2}
    v_lshl_add_u32 v{vKo}, v{vT0}, 8, v{vT2}
    v_xor_b32 v{vKo+1}, 16, v{vKo}
    v_xor_b32 v{vKo+2}, 32, v{vKo}
    s_lshl2_add_u32 s{sKoff}, s{sSplit}, s{sWave}
    s_lshl_b32 s{sKoff}, s{sKoff}, 12
    s_lshl_b32 s{sLds}, s{sWave}, 14
    s_lshl_b32 s{sT}, s3, 21
    s_mov_b32 s{sK+2}, {NREC}
    s_mov_b32 s{sK+3}, 0x20000
    s_mov_b32 m0, s{sLds}
    s_waitcnt lgkmcnt(0)
    s_add_u32 s{sK}, s6, s{sT}
    s_addc_u32 s{sK+1}, s7, 0
    ''')
    if stamps: a('s_memrealtime s[50:51]')
    for n in range(3): issue(n)
    a(f'''
    s_load_dwordx2 s[20:21], s[0:1], 64          ; ws
    v_xor_b32 v{vKo+3}, 48, v{vKo}
    s_mov_b32 s{sV0}, s{sKoff}
    s_lshr_b32 s{sHead}, s3, 2
    s_lshl2_add_u32 s3, s3, s{sSplit}
    s_and_b32 s{sSplit}, s3, 15
    v_and_b32 v{vT2}, 1, v{vLane}
    v_lshlrev_b32 v{vT3}, 4, v{vT0}
    v_lshl_add_u32 v{vPr}, v{vT2}, 8, v{vT3}
    s_lshl_b32 s{sT2}, s{sHead}, 9
    s_add_u32 s4, s4, s{sT2}
    s_addc_u32 s5, s5, 0
    ''')
    for t in range(4):
        if not exp & 2: a(f'global_load_dwordx4 v[{vQ+4*t}:{vQ+4*t+3}], v{vPr}, s[4:5] offset:{64*t}')
    a(f'''
    s_or_b32 s{sTree}, s{sWave}, s{sSplit}
    s_cbranch_scc1 L_notree0
    s_lshl_b32 s{sT2}, s{sHead}, 8
    s_add_u32 s10, s10, s{sT2}
    s_addc_u32 s11, s11, 0
    s_add_u32 s12, s12, s{sT2}
    s_addc_u32 s13, s13, 0
    v_mov_b32 v{vMk}, 0
    global_load_ushort v{vMk}, v{vMk}, s[14:15]
    ''')
    for t in range(4):
        a(f'global_load_dwordx4 v[{vB+4*t}:{vB+4*t+3}], v{vT3}, s[10:11] offset:{64*t}')
    a(f'''
    v_lshlrev_b32 v{vT2}, 4, v{vT1}
    global_load_dwordx4 v[{vVt}:{vVt+3}], v{vT2}, s[12:13]
    L_notree0:
    ''')
    for n in range(3, wmax): issue(n)
    a(f'''
    s_add_u32 s{sV}, s8, s{sT}
    s_addc_u32 s{sV+1}, s9, 0
    s_mov_b32 s{sV+2}, {NREC}
    s_mov_b32 s{sV+3}, 0x20000
    v_lshl_add_u32 v{vVoff}, v{vLane}, 4, s{sV0}
    v_mov_b32 v{vLv}, {CTRL}
    v_lshl_add_u32 v{vT2}, v{vLane}, 3, v{vLv}
    v_mov_b32 v{vS}, 0
    v_mov_b32 v{vS+1}, 0
    ds_write_b64 v{vT2}, v[{vS}:{vS+1}]
    s_lshl_b32 s{sT}, s{sWave}, 6
    s_add_u32 s{sT}, s{sT}, {CTRL + 256 - 4}
    v_mov_b32 v{vCt}, s{sT}
    s_mov_b32 s{sPat}, {(1 << base) - 1}
    s_mov_b32 s{sTc}, 0
    s_mov_b32 s{sTp}, 0
    v_and_b32 v{vT2}, 3, v{vT1}
    v_lshlrev_b32 v{vT2}, 10, v{vT2}
    v_lshrrev_b32 v{vT3}, 2, v{vT1}
    v_lshl_add_u32 v{vT2}, v{vT3}, 8, v{vT2}
    v_xor_b32 v{vT3}, v{vT0}, v{vT1}
    v_lshl_add_u32 v{vT2}, v{vT3}, 4, v{vT2}
    v_add_u32 v{vKr}, s{sLds}, v{vT2}
    v_xor_b32 v{vKr+1}, 64, v{vKr}
    v_xor_b32 v{vKr+2}, 0x80, v{vKr}
    v_xor_b32 v{vKr+3}, 0xc0, v{vKr}
    v_and_b32 v{vT2}, 1, v{vLane}
    v_lshl_add_u32 v{vT2}, v{vT0}, 1, v{vT2}
    s_mul_i32 s{sT}, s{sWave}, {SSTR}
    s_add_u32 s{sT}, s{sT}, {SAREA}
    v_lshl_add_u32 v{vSw}, v{vT2}, 4, s{sT}
    s_add_u32 s{sT}, s{sT}, 128
    v_lshl_add_u32 v{vPr}, v{vT2}, 3, s{sT}
    s_mov_b32 s{sC}, {f32(CSCALE)}               ; 128^-0.5 * log2(e)
    s_mov_b32 s{sPl}, 0x05040100
    s_mov_b32 s{sPh}, 0x07060302
    s_mov_b32 s{sSm}, 0x00030003
    s_mov_b32 s{sSm+1}, 0x00030003
    s_mov_b32 s{sCnt}, 7
    s_waitcnt lgkmcnt(0)
    s_barrier
    ''')
    if stamps:
        a(f's_memrealtime s[52:53]\ns_waitcnt vmcnt({wmax-1})\ns_memrealtime s[54:55]\ns_waitcnt vmcnt({wmax-4})\ns_memrealtime s[56:57]')
    def step(n):
        a(f's_waitcnt vmcnt({wmax - 1})')
        lab[0] += 1
        for dd in range(depth):
            a(f's_bitcmp1_b32 s{sPat}, {4 * dd + n % 4}\ns_cbranch_scc0 L_w{lab[0]}\ns_waitcnt vmcnt({wmax - 2 - dd})')
        a(f'L_w{lab[0]}:')
        issue(n + wmax)
    def steps(n0, work):
        for n in range(n0, n0 + 4):
            step(n)
            work(n - n0)
    def perms(k, p):
        for u in range(8):
            rl = vV + (k % 4) * 16 + 8 * p + u // 2
            a(f'v_perm_b32 v{vB+2*u+p}, v{rl+4}, v{rl}, s{sPl if u % 2 == 0 else sPh}')
    def pv():
        a('s_waitcnt lgkmcnt(0)')
        for u in range(8):
            a(f'v_mfma_f32_16x16x16_bf16 v[{vO+4*u}:{vO+4*u+3}], v[{vP}:{vP+1}], v[{vB+2*u}:{vB+2*u+1}], v[{vO+4*u}:{vO+4*u+3}]')
    def qk():
        a('s_waitcnt lgkmcnt(0)')
        for t in range(4):
            c = '0' if t == 0 else f'v[{vS}:{vS+3}]'
            a(f'v_mfma_f32_16x16x32_bf16 v[{vS}:{vS+3}], v[{vA+4*t}:{vA+4*t+3}], v[{vQ+4*t}:{vQ+4*t+3}], {c}')
    def kunit(k):
        a(f'; ---- K unit, ring slot {k % 4}')
        def work(e):
            if e == 0: qk()
            if e == 3:
                a(f's_mov_b64 exec, s[{sSm}:{sSm+1}]\nds_write_b128 v{vSw}, v[{vS}:{vS+3}] offset:{(k % 4) * 128}\ns_mov_b64 exec, -1')
                for t in range(4):
                    a(f'ds_read_b128 v[{vA+4*t}:{vA+4*t+3}], v{vKr+t} offset:{(k % 4) * 4096}')
        steps(4 * k, work)
        ctrl(k)
    a('L_kloop:')
    for k in range(4, 8): kunit(k)
    ckpt()
    a(f'''
    v_add_u32 v{vSw}, 0x200, v{vSw}
    s_sub_u32 s{sCnt}, s{sCnt}, 1
    s_cmp_lg_u32 s{sCnt}, 0
    s_cbranch_scc1 L_kloop
    ''')
    for k in range(28, 32): kunit(k)
    qk()
    ckpt()
    a(f'''
    v_mov_b32 v{vXt}, 0xff800000
    s_mul_i32 s{sT}, s{sWave}, {SSTR}
    s_add_u32 s{sT}, s{sT}, {SAREA + 128}
    v_lshl_add_u32 v{vT2}, v{vLane}, 4, s{sT}
    v_lshl_add_u32 v{vT3}, v{vLane}, 3, s{sT}
    s_mov_b64 exec, s[{sSm}:{sSm+1}]
    ds_write_b128 v{vSw}, v[{vS}:{vS+3}] offset:512
    s_mov_b64 exec, -1
    ''')
    for j in range(4):
        a(f'ds_read_b128 v[{vA+4*j}:{vA+4*j+3}], v{vT2} offset:{1024*j}')
    a(f's_cmp_lg_u32 s{sTree}, 0\ns_cbranch_scc1 L_notree1')
    for t in range(4):
        c = '0' if t == 0 else f'v[{vS}:{vS+3}]'
        a(f'v_mfma_f32_16x16x32_bf16 v[{vS}:{vS+3}], v[{vB+4*t}:{vB+4*t+3}], v[{vQ+4*t}:{vQ+4*t+3}], {c}')
    a(f'''
    v_lshlrev_b32 v{vMk}, 16, v{vMk}
    v_sub_f32 v{vMk}, 1.0, v{vMk}
    v_mul_f32 v{vMk}, {f32(MASKC)}, v{vMk}
    s_nop 4
    v_fma_f32 v{vXt}, v{vS}, s{sC}, v{vMk}
    L_notree1:
    s_waitcnt lgkmcnt(0)
    v_max3_f32 v{vM}, v{vA}, v{vA+1}, v{vA+2}
    v_max3_f32 v{vT0}, v{vA+3}, v{vA+4}, v{vA+5}
    v_max3_f32 v{vM}, v{vM}, v{vA+6}, v{vA+7}
    v_max3_f32 v{vT0}, v{vT0}, v{vA+8}, v{vA+9}
    v_max3_f32 v{vM}, v{vM}, v{vA+10}, v{vA+11}
    v_max3_f32 v{vT0}, v{vT0}, v{vA+12}, v{vA+13}
    v_max3_f32 v{vM}, v{vM}, v{vA+14}, v{vA+15}
    v_max_f32 v{vM}, v{vM}, v{vT0}
    v_mul_f32 v{vM}, s{sC}, v{vM}
    v_max_f32 v{vM}, v{vM}, v{vXt}
    ''')
    def allreduce(op, v):
        for r in (2, 4, 8):
            a(f's_nop 1\n{op}_dpp v{v}, v{v}, v{v} row_ror:{r} row_mask:0xf bank_mask:0xf')
        for sw in (16, 32):
            a(f'v_mov_b32 v{vT0}, v{v}\ns_nop 1\nv_permlane{sw}_swap_b32 v{v}, v{vT0}\n{op} v{v}, v{v}, v{vT0}')
    if weave: step(128)
    allreduce('v_max_f32', vM)
    for i in range(16): a(f'v_fma_f32 v{vA+i}, v{vA+i}, s{sC}, -v{vM}')
    a(f'v_sub_f32 v{vXt}, v{vXt}, v{vM}')
    if weave: step(129)
    for i in range(16): a(f'v_exp_f32 v{vA+i}, v{vA+i}')
    a(f'v_exp_f32 v{vXt}, v{vXt}')
    for j in range(4):
        a(f'v_cvt_pk_bf16_f32 v{vQ+2*j}, v{vA+4*j}, v{vA+4*j+1}')
        a(f'v_cvt_pk_bf16_f32 v{vQ+2*j+1}, v{vA+4*j+2}, v{vA+4*j+3}')
        a(f'ds_write_b64 v{vT3}, v[{vQ+2*j}:{vQ+2*j+1}] offset:{512*j}')
    if weave:
        a(f'ds_read_b64 v[{vP}:{vP+1}], v{vPr}')
        step(130)
    for st in (1, 2, 4, 8):
        for i in range(0, 16, 2 * st): a(f'v_add_f32 v{vA+i}, v{vA+i}, v{vA+i+st}')
    a(f'v_mov_b32 v{vL}, v{vA}')
    allreduce('v_add_f32', vL)
    a(f'v_add_f32 v{vL}, v{vL}, v{vXt}')
    for i in range(32): a(f'v_mov_b32 v{vO+i}, 0')
    a(f'''
    s_cmp_lg_u32 s{sTree}, 0
    s_cbranch_scc1 L_notree2
    v_readlane_b32 s{sT}, v{vXt}, 0
    v_readlane_b32 s{sT2}, v{vXt}, 1
    ''')
    for u in range(8):
        src = vVt + u // 2
        if u % 2 == 0: a(f'v_lshlrev_b32 v{vT0}, 16, v{src}')
        else: a(f'v_and_b32 v{vT0}, 0xffff0000, v{src}')
        a(f'v_mul_f32 v{vO+4*u}, s{sT}, v{vT0}\nv_mul_f32 v{vO+4*u+1}, s{sT2}, v{vT0}')
    a(f'''
    L_notree2:
    s_mov_b32 s{sCnt}, 7
    ''')
    if weave:
        perms(0, 0)
        step(131)
        perms(0, 1)
        pv()
        a('s_branch L_vloop1')
    else:
        a('s_waitcnt lgkmcnt(0)')
    a(f'''
    L_vloop:
    ''')
    def vunit(k):
        a(f'; ---- V unit, ring slot {k % 4}')
        def work(e):
            if e == 0: a(f'ds_read_b64 v[{vP}:{vP+1}], v{vPr} offset:{(k % 4) * 64}')
            if e % 2 == 1: perms(k, e // 2)
            if e == 3: pv()
        if k % 4 == 1: a('L_vloop1:')
        steps(128 + 4 * k, work)
        ctrl(k)
    for k in range(4, 8): vunit(k)
    if stamps: ckpt()
    a(f's_sub_u32 s{sCnt}, s{sCnt}, 1\ns_cbranch_scc1 L_vdone')
    if not stamps: ckpt()
    a(f'v_add_u32 v{vPr}, 0x100, v{vPr}\ns_branch L_vloop\nL_vdone:')
    if stamps: a(f's_memrealtime s[{sSt+2}:{sSt+3}]')
    a(f'''
    v_lshl_add_u32 v{vT0}, v{vLane}, 5, s{sLds}
    v_lshl_add_u32 v{vT1}, v{vLane}, 3, s{sLds}
    v_lshlrev_b32 v{vT2}, 4, v{vLane}
    v_lshrrev_b32 v{vT3}, 5, v{vLane}
    v_lshlrev_b32 v{vT3}, 3, v{vT3}
    v_mov_b32 v{vLv}, {CTRL + 128}
    s_mov_b64 exec, 3
    ds_write_b64 v{vT1}, v[{vM}:{vL}] offset:1024
    s_mov_b64 exec, 0xffff
    ''')
    for u in range(0, 8, 2):
        for r in range(2):
            a(f'ds_write2_b32 v{vT0}, v{vO+4*u+r}, v{vO+4*u+4+r} offset0:{128*r+u} offset1:{128*r+u+1}')
    a(f'''
    s_mov_b64 exec, -1
    s_waitcnt lgkmcnt(0)
    s_barrier
    s_cmp_lg_u32 s{sWave}, 0
    s_cbranch_scc1 {"L_tsonly" if stamps else "L_end"}
    ds_read_b32 v{vRec+2}, v{vLv}
    ''')
    for x in range(4):
        a(f'ds_read_b64 v[{vQ+2*x}:{vQ+2*x+1}], v{vT3} offset:{16384*x+1024}')
    for x in range(4):
        a(f'ds_read_b128 v[{vA+4*x}:{vA+4*x+3}], v{vT2} offset:{16384*x}')
    a(f'''
    s_lshl_b32 s{sT}, s3, 11
    s_add_u32 s22, s20, s{sT}
    s_addc_u32 s23, s21, 0
    v_lshlrev_b32 v{vT3}, 1, v{vT3}
    s_mov_b32 s76, 0x07060503
    s_mov_b32 s77, 0x07060502
    s_mov_b32 s78, 0x07060501
    s_waitcnt lgkmcnt(4)
    v_readfirstlane_b32 s{sT2}, v{vRec+2}
    v_max3_f32 v{vRec}, v{vQ}, v{vQ+2}, v{vQ+4}
    v_max_f32 v{vRec}, v{vRec}, v{vQ+6}
    ''')
    for x in range(4): a(f'v_sub_f32 v{vQ+2*x}, v{vQ+2*x}, v{vRec}')
    for x in range(4): a(f'v_exp_f32 v{vQ+2*x}, v{vQ+2*x}')
    a(f'''
    s_cmp_eq_u32 s{sT2}, 0
    s_cbranch_scc1 L_tagwait
    L_havetag:
    v_mul_f32 v{vRec+1}, v{vQ}, v{vQ+1}
    s_waitcnt lgkmcnt(0)
    ''')
    for j in range(4): a(f'v_mul_f32 v{vS+j}, v{vQ}, v{vA+j}')
    for x in range(1, 4):
        a(f'v_fma_f32 v{vRec+1}, v{vQ+2*x}, v{vQ+2*x+1}, v{vRec+1}')
        for j in range(4): a(f'v_fma_f32 v{vS+j}, v{vQ+2*x}, v{vA+4*x+j}, v{vS+j}')
    a(f'''
    v_perm_b32 v{vS}, v{vS}, v{vS+3}, s76
    v_perm_b32 v{vS+1}, v{vS+1}, v{vS+3}, s77
    v_perm_b32 v{vS+2}, v{vS+2}, v{vS+3}, s78
    v_mov_b32 v{vS+3}, v{vRec+2}
    {'s_memrealtime s[66:67]' if stamps else ''}
    global_store_dwordx4 v{vT2}, v[{vS}:{vS+3}], s[22:23] sc1
    s_mov_b32 exec_lo, 1
    s_mov_b32 exec_hi, 1
    global_store_dwordx3 v{vT3}, v[{vRec}:{vRec+2}], s[22:23] offset:1024 sc1
    ''')
    def wgstamp(worker):
        a(f'''
        s_waitcnt vmcnt(0)
        s_memrealtime s[{sSt+4}:{sSt+5}]
        s_waitcnt lgkmcnt(0)
        s_add_u32 s46, s20, 0x10000000
        s_addc_u32 s47, s21, 0
        s_lshl_b32 s49, s3, 5
        s_mov_b64 exec, 1
        v_mov_b32 v1, s49
        s_add_u32 s68, s20, 0x10200000
        s_addc_u32 s69, s21, 0
        v_mov_b32 v12, s66
        v_mov_b32 v13, s{sSt+4}
        v_mov_b32 v14, s{sSt+2}
        v_mov_b32 v15, s{sCnt}
        global_store_dwordx4 v1, v[12:15], s[68:69] offset:{0 if worker else 16}
        ''')
        if worker:
            a(f'''
            v_mov_b32 v4, s{sSt}
            v_mov_b32 v5, s{sSt+1}
            v_mov_b32 v6, s{sSt+2}
            v_mov_b32 v7, s{sSt+3}
            s_getreg_b32 s44, hwreg(HW_REG_XCC_ID)
            v_mov_b32 v10, s44
            v_mov_b32 v11, 0
            global_store_dwordx4 v1, v[4:7], s[46:47]
            global_store_dwordx2 v1, v[10:11], s[46:47] offset:24
            s_cmp_eq_u32 s{sSplit}, s{sHead}
            s_cbranch_scc1 L_tsonly
            ''')
        a(f'v_mov_b32 v16, s{sSt+4}\nv_mov_b32 v17, s{sSt+5}\nglobal_store_dwordx2 v1, v[16:17], s[46:47] offset:16')
    if stamps:
        wgstamp(True)
        a(f'''
        L_tsonly:
        s_mov_b64 exec, -1
        v_writelane_b32 v{vStamp}, s50, 59
        v_writelane_b32 v{vStamp}, s52, 58
        v_writelane_b32 v{vStamp}, s54, 57
        v_writelane_b32 v{vStamp}, s56, 56
        v_writelane_b32 v{vStamp}, s{sSt}, 63
        v_writelane_b32 v{vStamp}, s48, 62
        s_mov_b32 s49, 16384
        v_writelane_b32 v{vStamp}, s49, 61
        s_lshl_b32 s49, s3, 2
        s_add_u32 s49, s49, s{sWave}
        s_lshl_b32 s49, s49, 8
        v_lshl_add_u32 v{vLv}, v{vLane}, 2, s49
        s_add_u32 s46, s20, 0x10100000
        s_addc_u32 s47, s21, 0
        global_store_dword v{vLv}, v{vStamp}, s[46:47]
        ''')
    a(f'''
    L_end:
    s_endpgm
    L_tagwait:
    s_mov_b32 s{sCnt}, {spin}
    L_tagwait1:
    s_sleep 1
    ds_read_b32 v{vRec+2}, v{vLv}
    s_waitcnt lgkmcnt(0)
    v_readfirstlane_b32 s{sT2}, v{vRec+2}
    s_sub_u32 s{sCnt}, s{sCnt}, 1
    s_cmp_eq_u32 s{sCnt}, 0
    s_cbranch_scc1 L_havetag
    s_cmp_eq_u32 s{sT2}, 0
    s_cbranch_scc1 L_tagwait1
    s_branch L_havetag
    ''')
    sU, sCur, sPrev, sTag, sGuard, sRef, sRole = 50, 51, 52, 53, 54, 55, 56
    a(f'''
    L_helper:
    s_load_dwordx2 s[20:21], s[0:1], 64
    s_lshr_b32 s{sHead}, s3, 2
    s_lshl2_add_u32 s3, s3, s{sSplit}
    s_and_b32 s{sSplit}, s3, 15
    v_lshlrev_b32 v{vT2}, 4, v{vLane}
    s_lshl_b32 s{sT}, s{sHead}, 15
    s_mov_b32 s{sK+2}, 0x8000
    s_mov_b32 s{sK+3}, 0x20000
    s_sub_u32 s{sRole}, s{sSplit}, s{sHead}
    s_and_b32 s{sRole}, s{sRole}, 15
    v_lshlrev_b32 v{vT3}, 11, v{vT1}
    v_and_b32 v5, 16, v{vLane}
    v_add_u32 v5, v5, v{vT3}
    s_waitcnt lgkmcnt(0)
    s_add_u32 s{sK}, s20, s{sT}
    s_addc_u32 s{sK+1}, s21, 0
    s_barrier
    s_lshl_b32 s{sT}, s{sHead}, 2
    v_mov_b32 v6, s{sT}
    s_and_b32 s{sT}, s2, 3
    s_lshl_b32 s{sT}, s{sT}, 6
    s_add_u32 s{sT}, s{sT}, {CTRL + 256}
    v_mov_b32 v85, s{sT}
    v_mov_b32 v91, {CTRL}
    v_mov_b32 v94, {CTRL + 128}
    v_lshlrev_b32 v86, 8, v{vLane}
    s_sub_u32 s{sRef}, s2, {ref0}
    s_lshl_b32 s{sT}, s{sRef}, 8
    v_mov_b32 v87, s{sT}
    v_mov_b32 v90, 0
    v_mov_b32 v7, 0
    s_mov_b32 s{sU}, 1
    s_mov_b32 s{sCur}, 0
    s_mov_b32 s{sTag}, 0
    s_mov_b32 s{sGuard}, 0x4000
    s_add_u32 s46, s20, {FBOFF}
    s_addc_u32 s47, s21, 0
    {'v_mov_b32 v7, 1' if exp & 1 else ''}
    {'s_branch L_cw' if exp & 1 else ''}
    s_cmp_lg_u32 s{sRole}, 0
    s_cbranch_scc1 L_cw
    buffer_load_dword v16, v5, s[{sK}:{sK+3}], 0 offen offset:1032 sc1
    ''')
    for s in range(16):
        if s % 2 == 0: a(f's_movk_i32 s{sT}, {2048*s}')
        a(f'buffer_load_dword v{17+s}, v{vT2}, s[{sK}:{sK+3}], s{sT} offen offset:{2048*(s%2)+12} sc1')
    a(f'''
    s_mov_b32 s{sT}, 0
    s_waitcnt vmcnt(0)
    L_pick:
    s_add_u32 s{sT}, s{sT}, 1
    s_mov_b64 s[{sSm}:{sSm+1}], 0
    ''')
    for s in range(17):
        a(f'v_cmp_eq_u32 vcc, s{sT}, v{16+s}\ns_or_b64 s[{sSm}:{sSm+1}], s[{sSm}:{sSm+1}], vcc')
    a(f'''
    s_cbranch_scc1 L_pick
    v_mov_b32 v12, s{sT}
    s_mov_b64 exec, 1
    global_store_dword v6, v12, s[18:19] sc1
    s_mov_b64 exec, -1
    L_cw:
    ds_read_b32 v89, v85
    s_waitcnt lgkmcnt(0)
    v_readfirstlane_b32 s{sT}, v89
    s_cmp_lg_u32 s{sT}, 0
    s_cbranch_scc1 L_cgo
    s_sleep 1
    s_sub_u32 s{sGuard}, s{sGuard}, 1
    s_cmp_lg_u32 s{sGuard}, 0
    s_cbranch_scc1 L_cw
    s_branch L_cend
    L_cgo:
    s_mov_b32 s{sPrev}, s{sCur}
    s_mov_b32 s{sCur}, s{sT}
    v_add_u32 v85, 4, v85
    v_add_u32 v91, 4, v91
    s_cmp_eq_u32 s{sU}, 1
    s_cbranch_scc1 L_noload
    s_mov_b64 exec, {(1 << nref) - 1}
    global_load_dword v90, v86, s[46:47]
    L_noload:
    s_add_u32 s46, s46, {FBSTR}
    s_addc_u32 s47, s47, 0
    s_mov_b64 exec, 1
    s_cmp_ge_u32 s{sRef}, {nref}
    s_cbranch_scc1 L_nomark
    global_store_dword v87, v89, s[46:47] sc1
    L_nomark:
    s_cmp_lg_u32 s{sU}, {nat}
    s_cbranch_scc1 L_noget
    {'' if exp & 1 else 'global_load_dword v7, v6, s[18:19] sc1       ; launch tag'}
    L_noget:
    s_mov_b64 exec, -1
    s_waitcnt vmcnt(0)
    v_subrev_u32 v93, s{sPrev}, v90
    v_add_u32 v89, 512, v93
    v_cmp_gt_u32 vcc, 0x400, v89
    v_readfirstlane_b32 s{sTag}, v7
    s_nop 0
    v_cndmask_b32 v92, 0, v93, vcc
    ''')
    for r in (1, 2, 4, 8):
        a(f's_nop 1\nv_add_u32_dpp v92, v92, v92 row_ror:{r} row_mask:0xf bank_mask:0xf')
    a(f'''
    v_ashrrev_i32 v92, {int(math.log2(nref))}, v92
    v_add_u32 v92, s{sPrev}, v92
    s_mov_b64 exec, 1
    ds_write_b32 v91, v92
    ds_write_b32 v94, v7
    s_mov_b64 exec, -1
    s_add_u32 s{sU}, s{sU}, 1
    s_cmp_le_u32 s{sU}, {cend}
    s_cbranch_scc1 L_cw
    L_cend:
    s_mov_b32 s{sCnt}, {spin}
    L_tagspin:
    s_cmp_lg_u32 s{sTag}, 0
    s_cbranch_scc1 L_tagok
    global_load_dword v7, v6, s[18:19] sc1
    s_waitcnt vmcnt(0)
    v_readfirstlane_b32 s{sTag}, v7
    ds_write_b32 v94, v7
    s_waitcnt lgkmcnt(0)
    s_sub_u32 s{sCnt}, s{sCnt}, 1
    s_cmp_lg_u32 s{sCnt}, 0
    s_cbranch_scc1 L_tagspin
    L_tagok:
    s_and_b32 s{sT}, s{sRole}, 3
    s_cbranch_scc1 L_end
    s_lshl_b32 s{sT}, s{sRole}, 6
    v_lshl_add_u32 v{vT2}, v{vT1}, 4, s{sT}
    v_lshl_add_u32 v{vT2}, v{vT0}, 11, v{vT2}
    v_add_u32 v5, v{vT0}, v{vT1}
    v_and_b32 v5, 15, v5
    v_lshlrev_b32 v5, 11, v5
    s_lshr_b32 s{sT}, s{sRole}, 3
    s_lshl_b32 s{sT}, s{sT}, 4
    v_add_u32 v5, s{sT}, v5
    s_lshl_b32 s{sT}, s{sHead}, 9
    s_lshl_b32 s{sT2}, s{sRole}, 5
    s_add_u32 s{sT}, s{sT}, s{sT2}
    v_lshl_add_u32 v6, v{vT1}, 3, s{sT}
    v_lshl_add_u32 v6, v{vT0}, 1, v6
    s_mov_b32 s{sCnt}, {spin}
    s_movk_i32 s76, 0x2000
    s_movk_i32 s77, 0x4000
    s_movk_i32 s78, 0x6000
    s_mov_b32 s79, 0x0004000c
    s_mov_b32 s80, 0x04020100
    ''')
    def pissue(b):
        a(f'buffer_load_dwordx3 v[{b}:{b+2}], v5, s[{sK}:{sK+3}], 0 offen offset:1024 sc1')
        for j in range(4):
            so = '0' if j == 0 else f's{75+j}'
            a(f'buffer_load_dwordx4 v[{b+4+4*j}:{b+7+4*j}], v{vT2}, s[{sK}:{sK+3}], {so} offen sc1')
    def pcheck(b):
        a('s_waitcnt vmcnt(9)')
        a(f'v_cmp_ne_u32 s[{sSm}:{sSm+1}], s{sTag}, v{b+2}\nv_mov_b32 v8, v{b}')
        for r in (1, 2, 4, 8):
            a(f's_nop 1\nv_max_f32_dpp v8, v8, v8 row_ror:{r} row_mask:0xf bank_mask:0xf')
        a(f'v_sub_f32 v8, v{b}, v8\nv_exp_f32 v8, v8\ns_nop 0\nv_mul_f32 v9, v8, v{b+1}')
        for r in (1, 2, 4, 8):
            a(f's_nop 1\nv_add_f32_dpp v9, v9, v9 row_ror:{r} row_mask:0xf bank_mask:0xf')
        a('v_rcp_f32 v9, v9')
        for j in range(4): a(f'v_mov_b32 v{12+j}, 0')
        a('v_mul_f32 v8, v8, v9\ns_waitcnt vmcnt(5)')
        for j in range(4):
            o = b + 4 + 4 * j
            a(f'v_cmp_ne_u32 vcc, s{sTag}, v{o+3}')
            a(f'v_perm_b32 v10, v{o+1}, v{o+2}, s79')
            a(f'v_perm_b32 v10, v{o}, v10, s80')
            a(f's_or_b64 s[{sSm}:{sSm+1}], s[{sSm}:{sSm+1}], vcc')
            for x in range(3):
                a(f'v_fmac_f32_dpp v{12+x}, v8, v{o+x} row_newbcast:{4*j} row_mask:0xf bank_mask:0xf')
            a(f'v_fmac_f32_dpp v15, v8, v10 row_newbcast:{4*j} row_mask:0xf bank_mask:0xf')
        a(f'''
        s_nop 1
        v_permlane16_swap_b32 v12, v13
        v_permlane16_swap_b32 v14, v15
        v_add_f32 v12, v12, v13
        v_add_f32 v14, v14, v15
        s_cmp_eq_u64 s[{sSm}:{sSm+1}], 0
        s_nop 0
        v_permlane32_swap_b32 v12, v14
        v_add_f32 v12, v12, v14
        v_cvt_pk_bf16_f32 v12, v12, v12
        s_cbranch_scc1 L_polldone
        ''')
    pissue(16); pissue(40)
    a('L_poll:')
    pcheck(16)
    a(f's_cmp_eq_u32 s{sCnt}, {spin}\ns_cbranch_scc1 L_first')
    pissue(16)
    a('L_second:')
    pcheck(40)
    a(f's_cmp_lg_u32 s{sCnt}, {spin}\ns_cbranch_scc1 L_again\ns_barrier')
    if stamps: a(f's_memrealtime s[{sSt+2}:{sSt+3}]')
    pissue(16)
    a('L_again:')
    pissue(40)
    a(f'''
    s_sub_u32 s{sCnt}, s{sCnt}, 1
    s_cmp_lg_u32 s{sCnt}, 0
    s_cbranch_scc1 L_poll
    L_polldone:
    {'s_memrealtime s[66:67]' if stamps else ''}
    global_store_short v6, v12, s[16:17]
    ''')
    if stamps:
        a(f's_cmp_lg_u32 s{sRole}, 0\ns_cbranch_scc1 L_hend')
        wgstamp(False)
        a('L_hend:')
    a('s_endpgm\nL_first:\ns_waitcnt vmcnt(0)\ns_branch L_second')
    out = HEADER
    out += f'; @launch grid=(256,1,1) block=(320,1,1) lds={LDS}\n' + DOC
    out += '.amdgcn_target "amdgcn-amd-amdhsa--gfx950"\n.text\n' + a.text()
    out += '.section .rodata,"a"\n' + kd(main, NV, 82)
    return out

if __name__ == '__main__':
    kw = eval('dict(' + (sys.argv[2] if len(sys.argv) > 2 else '') + ')')
    open(sys.argv[1], 'w').write(gen(**kw))
```

```python
import sys, math
from gen import HEADER, NAME, G, kd, f32, CSCALE, MASKC

DOC = """;
"""

def gen(wmax=7, depth=2, base=6, gsh=4, lo=0, hi=8, cend=14, nref=8, ref0=8, cpos=2, nat=2, stamps=False, spin=1 << 20, exp=0, weave=1, perm=0, endn=0, endg=3, endb=None, vtouch=0, c0=0):
    cend += c0
    nat += c0
    a = G()
    main = NAME + '_kernel'
    pol = 'nt'
    vLane, vT0, vT1, vT2, vT3, vVoff, vSw, vPr, vCt, vStamp = range(10)
    vM, vL = 10, 11
    vKo = 12
    vKr = 16
    vS = 20
    vP = 24
    vRec = 24
    vXt, vMk = 26, 27
    vQ = 28
    vA = 44
    vB = 60
    vO = 76
    vVt = 108
    vV = 112
    vLv = 176
    NV = 177
    sK, sV = 24, 28
    sWave, sHead, sSplit, sKoff, sLds, sCnt, sC, sPl, sPh, sT, sT2, sTree = range(32, 44)
    sSm = 44
    sPat, sTc, sTp, sNow, sX, sY, sV0 = 58, 59, 74, 70, 72, 73, 75
    sSt = 60
    SAREA, SSTR = 65536, 4224
    CTRL = SAREA + 4 * SSTR
    LDS = CTRL + 1024
    FBOFF, FBSTR = 0x100000, 4352
    STEP, NREC = 65536, 0x200000
    lab = [0]

    def ckpt():
        nonlocal stamps
        a(f'''
        s_memrealtime s[{sNow}:{sNow+1}]
        s_mov_b32 s{sTp}, s{sTc}
        v_add_u32 v{vCt}, 4, v{vCt}
        s_waitcnt lgkmcnt(0)
        s_or_b32 s{sTc}, s{sNow}, 1
        v_mov_b32 v{vT0}, s{sTc}
        s_mov_b64 exec, 1
        ds_write_b32 v{vCt}, v{vT0}
        s_mov_b64 exec, -1
        ''')
        if stamps:
            a(f's_mov_b32 s49, m0\ns_mov_b32 m0, s48\ns_nop 0\nv_writelane_b32 v{vStamp}, s{sNow}, m0\ns_add_u32 s48, s48, 1\ns_mov_b32 m0, s49')
    def ctrl(k, late=False):
        if k % 4 != cpos: return
        eb = base if endb is None else endb
        a(f'''
        ds_read_b32 v{vT0}, v{vLv}
        v_add_u32 v{vLv}, 4, v{vLv}
        s_waitcnt lgkmcnt(0)
        v_readfirstlane_b32 s{sX}, v{vT0}
        s_sub_u32 s{sX}, s{sX}, s{sTp}
        s_add_u32 s{sY}, s{sX}, 512
        s_cmp_lt_u32 s{sY}, 1024
        s_cselect_b32 s{sX}, s{sX}, 0
        {f's_cmp_lt_u32 s{sCnt}, {endn}' if late and endn else ''}
        {f's_cselect_b32 s{sY}, {gsh - endg}, 0' if late and endn else ''}
        {f's_cselect_b32 s81, {eb}, {base}' if late and endn else ''}
        {f's_lshl_b32 s{sX}, s{sX}, s{sY}' if late and endn else ''}
        s_add_i32 s{sX}, s{sX}, {(1 << gsh) >> 1}
        s_ashr_i32 s{sX}, s{sX}, {gsh}
        s_add_i32 s{sX}, s{sX}, {'s81' if late and endn else base}
        s_max_i32 s{sX}, s{sX}, {lo}
        s_min_i32 s{sX}, s{sX}, {hi}
        s_bfm_b32 s{sPat}, s{sX}, 0
        ''')
    def issue(n):
        e = n & 3
        if n < 128:
            if e == 0 and n > 0:
                a(f's_add_u32 m0, s{sLds}, {((n >> 2) % 4) * 4096}\ns_add_u32 s{sKoff}, s{sKoff}, {STEP}')
            a(f'buffer_load_dwordx4 v{vKo+e}, s[{sK}:{sK+3}], s{sKoff} offen offset:{1024*e} {pol} lds')
        else:
            if e == 0 and n > 128:
                a(f'v_add_u32 v{vVoff}, {STEP}, v{vVoff}')
            r = vV + (((n - 128) >> 2) % 4) * 16 + 4 * e
            a(f'buffer_load_dwordx4 v[{r}:{r+3}], v{vVoff}, s[{sV}:{sV+3}], 0 offen offset:{1024*e} {pol}')

    a(f'.globl {main}\n.p2align 8\n.type {main},@function\n{main}:')
    a('s_load_dwordx16 s[4:19], s[0:1], 0')
    a('s_cmp_ge_u32 s2, 256\ns_cbranch_scc1 L_end')
    if perm: a(f's_mul_i32 s2, s2, {perm}\ns_add_u32 s2, s2, 77\ns_and_b32 s2, s2, 255')
    if stamps: a(f's_memrealtime s[{sSt}:{sSt+1}]\ns_mov_b32 s48, 0\nv_mov_b32 v{vStamp}, 0')
    a(f'''
    v_lshrrev_b32 v{vT0}, 6, v0
    v_and_b32 v{vLane}, 63, v0
    s_lshr_b32 s3, s2, 3
    v_readfirstlane_b32 s{sWave}, v{vT0}
    s_and_b32 s{sT}, s2, 1
    s_lshl1_add_u32 s3, s3, s{sT}
    s_bfe_u32 s{sSplit}, s2, 0x20001
    v_lshrrev_b32 v{vT0}, 4, v{vLane}            ; g = lane>>4
    v_and_b32 v{vT1}, 15, v{vLane}               ; i = lane&15
    s_cmp_eq_u32 s{sWave}, 4
    s_cbranch_scc1 L_helper
    v_lshlrev_b32 v{vT2}, 2, v{vT0}
    v_xor_b32 v{vT2}, v{vT2}, v{vT1}
    v_lshlrev_b32 v{vT2}, 4, v{vT2}
    v_lshl_add_u32 v{vKo}, v{vT0}, 8, v{vT2}
    v_xor_b32 v{vKo+1}, 16, v{vKo}
    v_xor_b32 v{vKo+2}, 32, v{vKo}
    s_lshl2_add_u32 s{sKoff}, s{sSplit}, s{sWave}
    s_lshl_b32 s{sKoff}, s{sKoff}, 12
    s_lshl_b32 s{sLds}, s{sWave}, 14
    s_lshl_b32 s{sT}, s3, 21
    s_mov_b32 s{sK+2}, {NREC}
    s_mov_b32 s{sK+3}, 0x20000
    s_mov_b32 m0, s{sLds}
    s_waitcnt lgkmcnt(0)
    s_add_u32 s{sK}, s6, s{sT}
    s_addc_u32 s{sK+1}, s7, 0
    ''')
    if stamps: a('s_memrealtime s[50:51]')
    for n in range(3): issue(n)
    a(f'''
    s_load_dwordx2 s[20:21], s[0:1], 64          ; ws
    v_xor_b32 v{vKo+3}, 48, v{vKo}
    s_mov_b32 s{sV0}, s{sKoff}
    s_lshr_b32 s{sHead}, s3, 2
    s_lshl2_add_u32 s3, s3, s{sSplit}
    s_and_b32 s{sSplit}, s3, 15
    v_and_b32 v{vT2}, 1, v{vLane}
    v_lshlrev_b32 v{vT3}, 4, v{vT0}
    v_lshl_add_u32 v{vPr}, v{vT2}, 8, v{vT3}
    s_lshl_b32 s{sT2}, s{sHead}, 9
    s_add_u32 s4, s4, s{sT2}
    s_addc_u32 s5, s5, 0
    ''')
    for t in range(4):
        if not exp & 2: a(f'global_load_dwordx4 v[{vQ+4*t}:{vQ+4*t+3}], v{vPr}, s[4:5] offset:{64*t}')
    a(f'''
    s_or_b32 s{sTree}, s{sWave}, s{sSplit}
    s_cbranch_scc1 L_notree0
    s_lshl_b32 s{sT2}, s{sHead}, 8
    s_add_u32 s10, s10, s{sT2}
    s_addc_u32 s11, s11, 0
    s_add_u32 s12, s12, s{sT2}
    s_addc_u32 s13, s13, 0
    v_mov_b32 v{vMk}, 0
    global_load_ushort v{vMk}, v{vMk}, s[14:15]
    ''')
    for t in range(4):
        a(f'global_load_dwordx4 v[{vB+4*t}:{vB+4*t+3}], v{vT3}, s[10:11] offset:{64*t}')
    a(f'''
    v_lshlrev_b32 v{vT2}, 4, v{vT1}
    global_load_dwordx4 v[{vVt}:{vVt+3}], v{vT2}, s[12:13]
    L_notree0:
    ''')
    for n in range(3, wmax): issue(n)
    a(f'''
    s_add_u32 s{sV}, s8, s{sT}
    s_addc_u32 s{sV+1}, s9, 0
    s_mov_b32 s{sV+2}, {NREC}
    s_mov_b32 s{sV+3}, 0x20000
    v_lshl_add_u32 v{vVoff}, v{vLane}, 4, s{sV0}
    v_mov_b32 v{vLv}, {CTRL}
    v_lshl_add_u32 v{vT2}, v{vLane}, 4, v{vLv}
    v_mov_b32 v{vS}, 0
    v_mov_b32 v{vS+1}, 0
    v_mov_b32 v{vS+2}, 0
    v_mov_b32 v{vS+3}, 0
    ds_write_b128 v{vT2}, v[{vS}:{vS+3}]
    {f'v_add_u32 v{vLv}, 4, v{vLv}' if c0 else ''}
    s_lshl_b32 s{sT}, s{sWave}, 7
    s_add_u32 s{sT}, s{sT}, {CTRL + 256 - 4}
    v_mov_b32 v{vCt}, s{sT}
    s_mov_b32 s{sPat}, {(1 << base) - 1}
    s_mov_b32 s{sTc}, 0
    s_mov_b32 s{sTp}, 0
    v_and_b32 v{vT2}, 3, v{vT1}
    v_lshlrev_b32 v{vT2}, 10, v{vT2}
    v_lshrrev_b32 v{vT3}, 2, v{vT1}
    v_lshl_add_u32 v{vT2}, v{vT3}, 8, v{vT2}
    v_xor_b32 v{vT3}, v{vT0}, v{vT1}
    v_lshl_add_u32 v{vT2}, v{vT3}, 4, v{vT2}
    v_add_u32 v{vKr}, s{sLds}, v{vT2}
    v_xor_b32 v{vKr+1}, 64, v{vKr}
    v_xor_b32 v{vKr+2}, 0x80, v{vKr}
    v_xor_b32 v{vKr+3}, 0xc0, v{vKr}
    v_and_b32 v{vT2}, 1, v{vLane}
    v_lshl_add_u32 v{vT2}, v{vT0}, 1, v{vT2}
    s_mul_i32 s{sT}, s{sWave}, {SSTR}
    s_add_u32 s{sT}, s{sT}, {SAREA}
    v_lshl_add_u32 v{vSw}, v{vT2}, 4, s{sT}
    s_add_u32 s{sT}, s{sT}, 128
    v_lshl_add_u32 v{vPr}, v{vT2}, 3, s{sT}
    s_mov_b32 s{sC}, {f32(CSCALE)}               ; 128^-0.5 * log2(e)
    s_mov_b32 s{sPl}, 0x05040100
    s_mov_b32 s{sPh}, 0x07060302
    s_mov_b32 s{sSm}, 0x00030003
    s_mov_b32 s{sSm+1}, 0x00030003
    s_mov_b32 s{sCnt}, 7
    s_waitcnt lgkmcnt(0)
    s_barrier
    ''')
    if c0:
        st, stamps = stamps, False
        ckpt()
        stamps = st
    if stamps:
        a(f's_memrealtime s[52:53]\ns_waitcnt vmcnt({wmax-1})\ns_memrealtime s[54:55]\ns_waitcnt vmcnt({wmax-4})\ns_memrealtime s[56:57]')
    def step(n):
        a(f's_waitcnt vmcnt({wmax - 1})')
        lab[0] += 1
        for dd in range(depth):
            a(f's_bitcmp1_b32 s{sPat}, {4 * dd + n % 4}\ns_cbranch_scc0 L_w{lab[0]}\ns_waitcnt vmcnt({wmax - 2 - dd})')
        a(f'L_w{lab[0]}:')
        issue(n + wmax)
    def steps(n0, work):
        for n in range(n0, n0 + 4):
            step(n)
            work(n - n0)
    def perms(k, p):
        for u in range(8):
            rl = vV + (k % 4) * 16 + 8 * p + u // 2
            a(f'v_perm_b32 v{vB+2*u+p}, v{rl+4}, v{rl}, s{sPl if u % 2 == 0 else sPh}')
    def pv():
        a('s_waitcnt lgkmcnt(0)')
        for u in range(8):
            a(f'v_mfma_f32_16x16x16_bf16 v[{vO+4*u}:{vO+4*u+3}], v[{vP}:{vP+1}], v[{vB+2*u}:{vB+2*u+1}], v[{vO+4*u}:{vO+4*u+3}]')
    def qk():
        a('s_waitcnt lgkmcnt(0)')
        for t in range(4):
            c = '0' if t == 0 else f'v[{vS}:{vS+3}]'
            a(f'v_mfma_f32_16x16x32_bf16 v[{vS}:{vS+3}], v[{vA+4*t}:{vA+4*t+3}], v[{vQ+4*t}:{vQ+4*t+3}], {c}')
    def kunit(k):
        a(f'; ---- K unit, ring slot {k % 4}')
        def work(e):
            if e == 0: qk()
            if e == 3:
                a(f's_mov_b64 exec, s[{sSm}:{sSm+1}]\nds_write_b128 v{vSw}, v[{vS}:{vS+3}] offset:{(k % 4) * 128}\ns_mov_b64 exec, -1')
                for t in range(4):
                    a(f'ds_read_b128 v[{vA+4*t}:{vA+4*t+3}], v{vKr+t} offset:{(k % 4) * 4096}')
        steps(4 * k, work)
        ctrl(k)
    a('L_kloop:')
    for k in range(4, 8): kunit(k)
    ckpt()
    a(f'''
    v_add_u32 v{vSw}, 0x200, v{vSw}
    s_sub_u32 s{sCnt}, s{sCnt}, 1
    s_cmp_lg_u32 s{sCnt}, 0
    s_cbranch_scc1 L_kloop
    ''')
    for k in range(28, 32): kunit(k)
    qk()
    ckpt()
    a(f'''
    v_mov_b32 v{vXt}, 0xff800000
    s_mul_i32 s{sT}, s{sWave}, {SSTR}
    s_add_u32 s{sT}, s{sT}, {SAREA + 128}
    v_lshl_add_u32 v{vT2}, v{vLane}, 4, s{sT}
    v_lshl_add_u32 v{vT3}, v{vLane}, 3, s{sT}
    s_mov_b64 exec, s[{sSm}:{sSm+1}]
    ds_write_b128 v{vSw}, v[{vS}:{vS+3}] offset:512
    s_mov_b64 exec, -1
    ''')
    for j in range(4):
        a(f'ds_read_b128 v[{vA+4*j}:{vA+4*j+3}], v{vT2} offset:{1024*j}')
    a(f's_cmp_lg_u32 s{sTree}, 0\ns_cbranch_scc1 L_notree1')
    for t in range(4):
        c = '0' if t == 0 else f'v[{vS}:{vS+3}]'
        a(f'v_mfma_f32_16x16x32_bf16 v[{vS}:{vS+3}], v[{vB+4*t}:{vB+4*t+3}], v[{vQ+4*t}:{vQ+4*t+3}], {c}')
    a(f'''
    v_lshlrev_b32 v{vMk}, 16, v{vMk}
    v_sub_f32 v{vMk}, 1.0, v{vMk}
    v_mul_f32 v{vMk}, {f32(MASKC)}, v{vMk}
    s_nop 4
    v_fma_f32 v{vXt}, v{vS}, s{sC}, v{vMk}
    L_notree1:
    s_waitcnt lgkmcnt(0)
    v_max3_f32 v{vM}, v{vA}, v{vA+1}, v{vA+2}
    v_max3_f32 v{vT0}, v{vA+3}, v{vA+4}, v{vA+5}
    v_max3_f32 v{vM}, v{vM}, v{vA+6}, v{vA+7}
    v_max3_f32 v{vT0}, v{vT0}, v{vA+8}, v{vA+9}
    v_max3_f32 v{vM}, v{vM}, v{vA+10}, v{vA+11}
    v_max3_f32 v{vT0}, v{vT0}, v{vA+12}, v{vA+13}
    v_max3_f32 v{vM}, v{vM}, v{vA+14}, v{vA+15}
    v_max_f32 v{vM}, v{vM}, v{vT0}
    v_mul_f32 v{vM}, s{sC}, v{vM}
    v_max_f32 v{vM}, v{vM}, v{vXt}
    ''')
    def allreduce(op, v):
        for r in (2, 4, 8):
            a(f's_nop 1\n{op}_dpp v{v}, v{v}, v{v} row_ror:{r} row_mask:0xf bank_mask:0xf')
        for sw in (16, 32):
            a(f'v_mov_b32 v{vT0}, v{v}\ns_nop 1\nv_permlane{sw}_swap_b32 v{v}, v{vT0}\n{op} v{v}, v{v}, v{vT0}')
    if weave: step(128)
    allreduce('v_max_f32', vM)
    for i in range(16): a(f'v_fma_f32 v{vA+i}, v{vA+i}, s{sC}, -v{vM}')
    a(f'v_sub_f32 v{vXt}, v{vXt}, v{vM}')
    if weave: step(129)
    for i in range(16): a(f'v_exp_f32 v{vA+i}, v{vA+i}')
    a(f'v_exp_f32 v{vXt}, v{vXt}')
    for j in range(4):
        a(f'v_cvt_pk_bf16_f32 v{vQ+2*j}, v{vA+4*j}, v{vA+4*j+1}')
        a(f'v_cvt_pk_bf16_f32 v{vQ+2*j+1}, v{vA+4*j+2}, v{vA+4*j+3}')
        a(f'ds_write_b64 v{vT3}, v[{vQ+2*j}:{vQ+2*j+1}] offset:{512*j}')
    if weave:
        a(f'ds_read_b64 v[{vP}:{vP+1}], v{vPr}')
        step(130)
    for st in (1, 2, 4, 8):
        for i in range(0, 16, 2 * st): a(f'v_add_f32 v{vA+i}, v{vA+i}, v{vA+i+st}')
    a(f'v_mov_b32 v{vL}, v{vA}')
    allreduce('v_add_f32', vL)
    a(f'v_add_f32 v{vL}, v{vL}, v{vXt}')
    for i in range(32): a(f'v_mov_b32 v{vO+i}, 0')
    a(f'''
    s_cmp_lg_u32 s{sTree}, 0
    s_cbranch_scc1 L_notree2
    v_readlane_b32 s{sT}, v{vXt}, 0
    v_readlane_b32 s{sT2}, v{vXt}, 1
    ''')
    for u in range(8):
        src = vVt + u // 2
        if u % 2 == 0: a(f'v_lshlrev_b32 v{vT0}, 16, v{src}')
        else: a(f'v_and_b32 v{vT0}, 0xffff0000, v{src}')
        a(f'v_mul_f32 v{vO+4*u}, s{sT}, v{vT0}\nv_mul_f32 v{vO+4*u+1}, s{sT2}, v{vT0}')
    a(f'''
    L_notree2:
    s_mov_b32 s{sCnt}, 7
    ''')
    if weave:
        perms(0, 0)
        step(131)
        perms(0, 1)
        pv()
        a('s_branch L_vloop1')
    else:
        a('s_waitcnt lgkmcnt(0)')
    a(f'''
    L_vloop:
    ''')
    def vunit(k):
        a(f'; ---- V unit, ring slot {k % 4}')
        def work(e):
            if e == 0: a(f'ds_read_b64 v[{vP}:{vP+1}], v{vPr} offset:{(k % 4) * 64}')
            if e % 2 == 1: perms(k, e // 2)
            if e == 3: pv()
        if k % 4 == 1: a('L_vloop1:')
        steps(128 + 4 * k, work)
        ctrl(k, True)
    for k in range(4, 8): vunit(k)
    if stamps: ckpt()
    a(f's_sub_u32 s{sCnt}, s{sCnt}, 1\ns_cbranch_scc1 L_vdone')
    if not stamps: ckpt()
    a(f'v_add_u32 v{vPr}, 0x100, v{vPr}\ns_branch L_vloop\nL_vdone:')
    if stamps: a(f's_memrealtime s[{sSt+2}:{sSt+3}]')
    a(f'''
    v_lshl_add_u32 v{vT0}, v{vLane}, 5, s{sLds}
    v_lshl_add_u32 v{vT1}, v{vLane}, 3, s{sLds}
    v_lshlrev_b32 v{vT2}, 4, v{vLane}
    v_lshrrev_b32 v{vT3}, 5, v{vLane}
    v_lshlrev_b32 v{vT3}, 3, v{vT3}
    v_mov_b32 v{vLv}, {CTRL + 128}
    s_mov_b64 exec, 3
    ds_write_b64 v{vT1}, v[{vM}:{vL}] offset:1024
    s_mov_b64 exec, 0xffff
    ''')
    for u in range(0, 8, 2):
        for r in range(2):
            a(f'ds_write2_b32 v{vT0}, v{vO+4*u+r}, v{vO+4*u+4+r} offset0:{128*r+u} offset1:{128*r+u+1}')
    a(f'''
    s_mov_b64 exec, -1
    s_waitcnt lgkmcnt(0)
    s_barrier
    s_cmp_lg_u32 s{sWave}, 0
    s_cbranch_scc1 {"L_tsonly" if stamps else "L_end"}
    ds_read_b32 v{vRec+2}, v{vLv}
    ''')
    for x in range(4):
        a(f'ds_read_b64 v[{vQ+2*x}:{vQ+2*x+1}], v{vT3} offset:{16384*x+1024}')
    for x in range(4):
        a(f'ds_read_b128 v[{vA+4*x}:{vA+4*x+3}], v{vT2} offset:{16384*x}')
    a(f'''
    s_lshl_b32 s{sT}, s3, 11
    s_add_u32 s22, s20, s{sT}
    s_addc_u32 s23, s21, 0
    v_lshlrev_b32 v{vT3}, 1, v{vT3}
    s_mov_b32 s76, 0x07060503
    s_mov_b32 s77, 0x07060502
    s_mov_b32 s78, 0x07060501
    s_waitcnt lgkmcnt(4)
    v_readfirstlane_b32 s{sT2}, v{vRec+2}
    v_max3_f32 v{vRec}, v{vQ}, v{vQ+2}, v{vQ+4}
    v_max_f32 v{vRec}, v{vRec}, v{vQ+6}
    ''')
    for x in range(4): a(f'v_sub_f32 v{vQ+2*x}, v{vQ+2*x}, v{vRec}')
    for x in range(4): a(f'v_exp_f32 v{vQ+2*x}, v{vQ+2*x}')
    a(f'''
    s_cmp_eq_u32 s{sT2}, 0
    s_cbranch_scc1 L_tagwait
    L_havetag:
    v_mul_f32 v{vRec+1}, v{vQ}, v{vQ+1}
    s_waitcnt lgkmcnt(0)
    ''')
    for j in range(4): a(f'v_mul_f32 v{vS+j}, v{vQ}, v{vA+j}')
    for x in range(1, 4):
        a(f'v_fma_f32 v{vRec+1}, v{vQ+2*x}, v{vQ+2*x+1}, v{vRec+1}')
        for j in range(4): a(f'v_fma_f32 v{vS+j}, v{vQ+2*x}, v{vA+4*x+j}, v{vS+j}')
    a(f'''
    v_perm_b32 v{vS}, v{vS}, v{vS+3}, s76
    v_perm_b32 v{vS+1}, v{vS+1}, v{vS+3}, s77
    v_perm_b32 v{vS+2}, v{vS+2}, v{vS+3}, s78
    v_mov_b32 v{vS+3}, v{vRec+2}
    {'s_memrealtime s[66:67]' if stamps else ''}
    global_store_dwordx4 v{vT2}, v[{vS}:{vS+3}], s[22:23] sc1
    s_mov_b32 exec_lo, 1
    s_mov_b32 exec_hi, 1
    global_store_dwordx3 v{vT3}, v[{vRec}:{vRec+2}], s[22:23] offset:1024 sc1
    ''')
    def wgstamp(worker):
        a(f'''
        s_waitcnt vmcnt(0)
        s_memrealtime s[{sSt+4}:{sSt+5}]
        s_waitcnt lgkmcnt(0)
        s_add_u32 s46, s20, 0x10000000
        s_addc_u32 s47, s21, 0
        s_lshl_b32 s49, s3, 5
        s_mov_b64 exec, 1
        v_mov_b32 v1, s49
        s_add_u32 s68, s20, 0x10200000
        s_addc_u32 s69, s21, 0
        v_mov_b32 v12, s66
        v_mov_b32 v13, s{sSt+4}
        v_mov_b32 v14, s{sSt+2}
        v_mov_b32 v15, s{sCnt}
        global_store_dwordx4 v1, v[12:15], s[68:69] offset:{0 if worker else 16}
        ''')
        if worker:
            a(f'''
            v_mov_b32 v4, s{sSt}
            v_mov_b32 v5, s{sSt+1}
            v_mov_b32 v6, s{sSt+2}
            v_mov_b32 v7, s{sSt+3}
            s_getreg_b32 s44, hwreg(HW_REG_XCC_ID)
            v_mov_b32 v10, s44
            v_mov_b32 v11, 0
            global_store_dwordx4 v1, v[4:7], s[46:47]
            global_store_dwordx2 v1, v[10:11], s[46:47] offset:24
            s_cmp_eq_u32 s{sSplit}, s{sHead}
            s_cbranch_scc1 L_tsonly
            ''')
        a(f'v_mov_b32 v16, s{sSt+4}\nv_mov_b32 v17, s{sSt+5}\nglobal_store_dwordx2 v1, v[16:17], s[46:47] offset:16')
    if stamps:
        wgstamp(True)
        a(f'''
        L_tsonly:
        s_mov_b64 exec, -1
        v_writelane_b32 v{vStamp}, s50, 59
        v_writelane_b32 v{vStamp}, s52, 58
        v_writelane_b32 v{vStamp}, s54, 57
        v_writelane_b32 v{vStamp}, s56, 56
        v_writelane_b32 v{vStamp}, s{sSt}, 63
        v_writelane_b32 v{vStamp}, s48, 62
        s_mov_b32 s49, 16384
        v_writelane_b32 v{vStamp}, s49, 61
        s_lshl_b32 s49, s3, 2
        s_add_u32 s49, s49, s{sWave}
        s_lshl_b32 s49, s49, 8
        v_lshl_add_u32 v{vLv}, v{vLane}, 2, s49
        s_add_u32 s46, s20, 0x10100000
        s_addc_u32 s47, s21, 0
        global_store_dword v{vLv}, v{vStamp}, s[46:47]
        ''')
    a(f'''
    L_end:
    s_endpgm
    L_tagwait:
    s_mov_b32 s{sCnt}, {spin}
    L_tagwait1:
    s_sleep 1
    ds_read_b32 v{vRec+2}, v{vLv}
    s_waitcnt lgkmcnt(0)
    v_readfirstlane_b32 s{sT2}, v{vRec+2}
    s_sub_u32 s{sCnt}, s{sCnt}, 1
    s_cmp_eq_u32 s{sCnt}, 0
    s_cbranch_scc1 L_havetag
    s_cmp_eq_u32 s{sT2}, 0
    s_cbranch_scc1 L_tagwait1
    s_branch L_havetag
    ''')
    sU, sCur, sPrev, sTag, sGuard, sRef, sRole = 50, 51, 52, 53, 54, 55, 56
    a(f'''
    L_helper:
    s_load_dwordx2 s[20:21], s[0:1], 64
    s_lshr_b32 s{sHead}, s3, 2
    s_lshl2_add_u32 s3, s3, s{sSplit}
    s_and_b32 s{sSplit}, s3, 15
    v_lshlrev_b32 v{vT2}, 4, v{vLane}
    s_lshl_b32 s{sT}, s{sHead}, 15
    s_mov_b32 s{sK+2}, 0x8000
    s_mov_b32 s{sK+3}, 0x20000
    s_sub_u32 s{sRole}, s{sSplit}, s{sHead}
    s_and_b32 s{sRole}, s{sRole}, 15
    v_lshlrev_b32 v{vT3}, 11, v{vT1}
    v_and_b32 v5, 16, v{vLane}
    v_add_u32 v5, v5, v{vT3}
    s_waitcnt lgkmcnt(0)
    s_add_u32 s{sK}, s20, s{sT}
    s_addc_u32 s{sK+1}, s21, 0
    s_barrier
    s_lshl_b32 s{sT}, s{sHead}, 2
    v_mov_b32 v6, s{sT}
    s_and_b32 s{sT}, s2, 3
    s_lshl_b32 s{sT}, s{sT}, 7
    s_add_u32 s{sT}, s{sT}, {CTRL + 256}
    v_mov_b32 v85, s{sT}
    v_mov_b32 v91, {CTRL}
    v_mov_b32 v94, {CTRL + 128}
    v_lshlrev_b32 v86, 8, v{vLane}
    s_sub_u32 s{sRef}, s2, {ref0}
    s_lshl_b32 s{sT}, s{sRef}, 8
    v_mov_b32 v87, s{sT}
    {f's_lshr_b32 s{sT}, s3, 2' if vtouch else ''}
    {f's_lshl_b32 s{sT}, s{sT}, 21' if vtouch else ''}
    {f'v_mov_b32 v96, s{sT}' if vtouch else ''}
    v_mov_b32 v90, 0
    v_mov_b32 v7, 0
    s_mov_b32 s{sU}, 1
    s_mov_b32 s{sCur}, 0
    s_mov_b32 s{sTag}, 0
    s_mov_b32 s{sGuard}, 0x4000
    s_add_u32 s46, s20, {FBOFF}
    s_addc_u32 s47, s21, 0
    {'v_mov_b32 v7, 1' if exp & 1 else ''}
    {'s_branch L_cw' if exp & 1 else ''}
    s_cmp_lg_u32 s{sRole}, 0
    s_cbranch_scc1 L_cw
    buffer_load_dword v16, v5, s[{sK}:{sK+3}], 0 offen offset:1032 sc1
    ''')
    for s in range(16):
        if s % 2 == 0: a(f's_movk_i32 s{sT}, {2048*s}')
        a(f'buffer_load_dword v{17+s}, v{vT2}, s[{sK}:{sK+3}], s{sT} offen offset:{2048*(s%2)+12} sc1')
    a(f'''
    s_mov_b32 s{sT}, 0
    s_waitcnt vmcnt(0)
    L_pick:
    s_add_u32 s{sT}, s{sT}, 1
    s_mov_b64 s[{sSm}:{sSm+1}], 0
    ''')
    for s in range(17):
        a(f'v_cmp_eq_u32 vcc, s{sT}, v{16+s}\ns_or_b64 s[{sSm}:{sSm+1}], s[{sSm}:{sSm+1}], vcc')
    a(f'''
    s_cbranch_scc1 L_pick
    v_mov_b32 v12, s{sT}
    s_mov_b64 exec, 1
    global_store_dword v6, v12, s[18:19] sc1
    s_mov_b64 exec, -1
    L_cw:
    ds_read_b32 v89, v85
    s_waitcnt lgkmcnt(0)
    v_readfirstlane_b32 s{sT}, v89
    s_cmp_lg_u32 s{sT}, 0
    s_cbranch_scc1 L_cgo
    s_sleep 1
    s_sub_u32 s{sGuard}, s{sGuard}, 1
    s_cmp_lg_u32 s{sGuard}, 0
    s_cbranch_scc1 L_cw
    s_branch L_cend
    L_cgo:
    s_mov_b32 s{sPrev}, s{sCur}
    s_mov_b32 s{sCur}, s{sT}
    v_add_u32 v85, 4, v85
    v_add_u32 v91, 4, v91
    s_cmp_eq_u32 s{sU}, 1
    s_cbranch_scc1 L_noload
    s_mov_b64 exec, {(1 << nref) - 1}
    global_load_dword v90, v86, s[46:47]
    L_noload:
    s_add_u32 s46, s46, {FBSTR}
    s_addc_u32 s47, s47, 0
    s_mov_b64 exec, 1
    s_cmp_ge_u32 s{sRef}, {nref}
    s_cbranch_scc1 L_nomark
    global_store_dword v87, v89, s[46:47] sc1
    L_nomark:
    s_cmp_lg_u32 s{sU}, {nat}
    s_cbranch_scc1 L_noget
    {'' if exp & 1 else 'global_load_dword v7, v6, s[18:19] sc1       ; launch tag'}
    L_noget:
    {f's_cmp_lg_u32 s{sU}, {vtouch}' if vtouch else ''}
    {'s_cbranch_scc1 L_notouch' if vtouch else ''}
    {'global_load_dword v95, v96, s[8:9] nt' if vtouch else ''}
    {'L_notouch:' if vtouch else ''}
    s_mov_b64 exec, -1
    s_waitcnt vmcnt(0)
    v_subrev_u32 v93, s{sPrev}, v90
    v_add_u32 v89, 512, v93
    v_cmp_gt_u32 vcc, 0x400, v89
    v_readfirstlane_b32 s{sTag}, v7
    s_nop 0
    v_cndmask_b32 v92, 0, v93, vcc
    ''')
    for r in (1, 2, 4, 8):
        a(f's_nop 1\nv_add_u32_dpp v92, v92, v92 row_ror:{r} row_mask:0xf bank_mask:0xf')
    a(f'''
    v_ashrrev_i32 v92, {int(math.log2(nref))}, v92
    v_add_u32 v92, s{sPrev}, v92
    s_mov_b64 exec, 1
    ds_write_b32 v91, v92
    ds_write_b32 v94, v7
    s_mov_b64 exec, -1
    s_add_u32 s{sU}, s{sU}, 1
    s_cmp_le_u32 s{sU}, {cend}
    s_cbranch_scc1 L_cw
    L_cend:
    s_mov_b32 s{sCnt}, {spin}
    L_tagspin:
    s_cmp_lg_u32 s{sTag}, 0
    s_cbranch_scc1 L_tagok
    global_load_dword v7, v6, s[18:19] sc1
    s_waitcnt vmcnt(0)
    v_readfirstlane_b32 s{sTag}, v7
    ds_write_b32 v94, v7
    s_waitcnt lgkmcnt(0)
    s_sub_u32 s{sCnt}, s{sCnt}, 1
    s_cmp_lg_u32 s{sCnt}, 0
    s_cbranch_scc1 L_tagspin
    L_tagok:
    s_and_b32 s{sT}, s{sRole}, 3
    s_cbranch_scc1 L_end
    s_lshl_b32 s{sT}, s{sRole}, 6
    v_lshl_add_u32 v{vT2}, v{vT1}, 4, s{sT}
    v_lshl_add_u32 v{vT2}, v{vT0}, 11, v{vT2}
    v_add_u32 v5, v{vT0}, v{vT1}
    v_and_b32 v5, 15, v5
    v_lshlrev_b32 v5, 11, v5
    s_lshr_b32 s{sT}, s{sRole}, 3
    s_lshl_b32 s{sT}, s{sT}, 4
    v_add_u32 v5, s{sT}, v5
    s_lshl_b32 s{sT}, s{sHead}, 9
    s_lshl_b32 s{sT2}, s{sRole}, 5
    s_add_u32 s{sT}, s{sT}, s{sT2}
    v_lshl_add_u32 v6, v{vT1}, 3, s{sT}
    v_lshl_add_u32 v6, v{vT0}, 1, v6
    s_mov_b32 s{sCnt}, {spin}
    s_movk_i32 s76, 0x2000
    s_movk_i32 s77, 0x4000
    s_movk_i32 s78, 0x6000
    s_mov_b32 s79, 0x0004000c
    s_mov_b32 s80, 0x04020100
    ''')
    def pissue(b):
        a(f'buffer_load_dwordx3 v[{b}:{b+2}], v5, s[{sK}:{sK+3}], 0 offen offset:1024 sc1')
        for j in range(4):
            so = '0' if j == 0 else f's{75+j}'
            a(f'buffer_load_dwordx4 v[{b+4+4*j}:{b+7+4*j}], v{vT2}, s[{sK}:{sK+3}], {so} offen sc1')
    def pcheck(b):
        a('s_waitcnt vmcnt(9)')
        a(f'v_cmp_ne_u32 s[{sSm}:{sSm+1}], s{sTag}, v{b+2}\nv_mov_b32 v8, v{b}')
        for r in (1, 2, 4, 8):
            a(f's_nop 1\nv_max_f32_dpp v8, v8, v8 row_ror:{r} row_mask:0xf bank_mask:0xf')
        a(f'v_sub_f32 v8, v{b}, v8\nv_exp_f32 v8, v8\ns_nop 0\nv_mul_f32 v9, v8, v{b+1}')
        for r in (1, 2, 4, 8):
            a(f's_nop 1\nv_add_f32_dpp v9, v9, v9 row_ror:{r} row_mask:0xf bank_mask:0xf')
        a('v_rcp_f32 v9, v9')
        for j in range(4): a(f'v_mov_b32 v{12+j}, 0')
        a('v_mul_f32 v8, v8, v9\ns_waitcnt vmcnt(5)')
        for j in range(4):
            o = b + 4 + 4 * j
            a(f'v_cmp_ne_u32 vcc, s{sTag}, v{o+3}')
            a(f'v_perm_b32 v10, v{o+1}, v{o+2}, s79')
            a(f'v_perm_b32 v10, v{o}, v10, s80')
            a(f's_or_b64 s[{sSm}:{sSm+1}], s[{sSm}:{sSm+1}], vcc')
            for x in range(3):
                a(f'v_fmac_f32_dpp v{12+x}, v8, v{o+x} row_newbcast:{4*j} row_mask:0xf bank_mask:0xf')
            a(f'v_fmac_f32_dpp v15, v8, v10 row_newbcast:{4*j} row_mask:0xf bank_mask:0xf')
        a(f'''
        s_nop 1
        v_permlane16_swap_b32 v12, v13
        v_permlane16_swap_b32 v14, v15
        v_add_f32 v12, v12, v13
        v_add_f32 v14, v14, v15
        s_cmp_eq_u64 s[{sSm}:{sSm+1}], 0
        s_nop 0
        v_permlane32_swap_b32 v12, v14
        v_add_f32 v12, v12, v14
        v_cvt_pk_bf16_f32 v12, v12, v12
        s_cbranch_scc1 L_polldone
        ''')
    pissue(16); pissue(40)
    a('L_poll:')
    pcheck(16)
    a(f's_cmp_eq_u32 s{sCnt}, {spin}\ns_cbranch_scc1 L_first')
    pissue(16)
    a('L_second:')
    pcheck(40)
    a(f's_cmp_lg_u32 s{sCnt}, {spin}\ns_cbranch_scc1 L_again\ns_barrier')
    if stamps: a(f's_memrealtime s[{sSt+2}:{sSt+3}]')
    pissue(16)
    a('L_again:')
    pissue(40)
    a(f'''
    s_sub_u32 s{sCnt}, s{sCnt}, 1
    s_cmp_lg_u32 s{sCnt}, 0
    s_cbranch_scc1 L_poll
    L_polldone:
    {'s_memrealtime s[66:67]' if stamps else ''}
    global_store_short v6, v12, s[16:17]
    ''')
    if stamps:
        a(f's_cmp_lg_u32 s{sRole}, 0\ns_cbranch_scc1 L_hend')
        wgstamp(False)
        a('L_hend:')
    a('s_endpgm\nL_first:\ns_waitcnt vmcnt(0)\ns_branch L_second')
    out = HEADER
    out += f'; @launch grid=(256,1,1) block=(320,1,1) lds={LDS}\n' + DOC
    out += '.amdgcn_target "amdgcn-amd-amdhsa--gfx950"\n.text\n' + a.text()
    out += '.section .rodata,"a"\n' + kd(main, NV, 82)
    return out

if __name__ == '__main__':
    kw = eval('dict(' + (sys.argv[2] if len(sys.argv) > 2 else '') + ')')
    open(sys.argv[1], 'w').write(gen(**kw))
```
